```python
import torch

def _softmax(x, axis=-1):
    return torch.softmax(x, dim=axis)

def _gelu(x):
    return torch.nn.functional.gelu(x, approximate='tanh')

def _silu(x):
    return torch.nn.functional.silu(x)

def _sigmoid(x):
    return torch.sigmoid(x)

def _layernorm(x, axis=-1, eps=1e-05):
    m = x.mean(dim=axis, keepdim=True)
    v = x.var(dim=axis, keepdim=True, unbiased=False)
    return (x - m) / torch.sqrt(v + eps)

def _scatter_add(tgt, idx, src, axis=0):
    return tgt.clone().index_add_(axis, idx, src)

def _segment_sum(src, seg, n):
    out = torch.zeros((n,) + src.shape[1:], dtype=src.dtype)
    return out.index_add_(0, seg, src)

def _pad(x, pw):
    flat = tuple((v for pair in reversed(pw) for v in pair))
    return torch.nn.functional.pad(x, flat)
kernel_name = 'adaLN_cond__ssm_conv_h3__dense_activation_relu__prompt'

def setup_inputs():

    _w = lambda a: (lambda t: t.to(torch.bfloat16) if t.is_floating_point() else t)(torch.as_tensor(a))

    def _A_setup():
        B, S, D = (1, 2048, 512)
        ks = 4
        return {'q': _w((lambda *s: torch.randn(*s, dtype=torch.bfloat16) * 0.05)(B, S, D)), 'k': _w((lambda *s: torch.randn(*s, dtype=torch.bfloat16) * 0.8)(B, S, D)), 'v': _w((lambda *s: torch.randn(*s, dtype=torch.bfloat16) * 0.8)(B, S, D)), 'shift_k': _w((lambda *s: torch.randn(*s, dtype=torch.bfloat16) * 0.8)(D, ks) * 0.5), 'ssm_k': _w((lambda *s: torch.randn(*s, dtype=torch.bfloat16) * 0.8)(D, S) * (1.0 / S ** 0.5)), 'ssm_D': _w((lambda *s: torch.randn(*s, dtype=torch.bfloat16) * 0.8)(D))}
    _A_in = _A_setup()

    def _B_setup():
        B, S, D, Dff = (1, 2048, 512, 1792)
        return {'x': _w((lambda *s: torch.randn(*s, dtype=torch.bfloat16) * 0.05)(B, S, D)), 'w1': _w((lambda *s: torch.randn(*s, dtype=torch.bfloat16) * 0.05)(D, Dff)), 'w2': _w((lambda *s: torch.randn(*s, dtype=torch.bfloat16) * 0.05)(Dff, D))}
    _B_in = _B_setup()
    return {'A_q': _A_in['q'], 'A_k': _A_in['k'], 'A_v': _A_in['v'], 'A_shift_k': _A_in['shift_k'], 'A_ssm_k': _A_in['ssm_k'], 'A_ssm_D': _A_in['ssm_D'], 'B_x': _B_in['x'], 'B_w1': _B_in['w1'], 'B_w2': _B_in['w2'], 'c': _w((lambda *s: torch.randn(*s, dtype=torch.bfloat16) * 0.2)(1, 512) * 8.0), 'w_mod': _w((lambda *s: torch.randn(*s, dtype=torch.bfloat16) * 0.2)(512, 6 * 512) * 512 ** (-0.5) * 8.0)}

def reference(A_q, A_k, A_v, A_shift_k, A_ssm_k, A_ssm_D, B_x, B_w1, B_w2, c, w_mod):

    def _A_ref(q, k, v, shift_k, ssm_k, ssm_D):
        B, S, D = q.shape
        ks = shift_k.shape[-1]
        k_pad = _pad(k, ((0, 0), (ks - 1, 0), (0, 0)))
        k_shift = torch.zeros_like(k)
        for t in range(ks):
            k_shift = k_shift + k_pad[:, t:t + S, :] * shift_k[:, ks - 1 - t][None, None, :]
        kv = k_shift * v
        L = 2 * S
        kv_pad = _pad(kv, ((0, 0), (0, S), (0, 0)))
        kf_pad = _pad(ssm_k, ((0, 0), (0, S)))
        kv_f = (lambda x, axes=(-2, -1): torch.fft.rfft2(x.float(), dim=axes))(kv_pad[:, None, :, :], axes=(1, 2))
        kf_f = (lambda x, axes=(-2, -1): torch.fft.rfft2(x.float(), dim=axes))(kf_pad[:, None, :], axes=(1, 2))
        kf_f = (lambda x, *d: x.permute(*d))(kf_f, 1, 2, 0)
        y_f = kv_f * kf_f[None, :, :, :]
        y = (lambda x, s, axes=(-2, -1): torch.fft.irfft2(x, s=s, dim=axes).to(torch.bfloat16))(y_f, (1, L), axes=(1, 2))[:, 0, :S, :]
        y = y + kv * ssm_D[None, None, :]
        return q * y

    def _B_ref(x, w1, w2):
        h = torch.einsum('bsd,df->bsf', x, w1)
        zero = torch.zeros_like(h)
        h = torch.maximum(h, zero)
        return torch.einsum('bsf,fd->bsd', h, w2)
    x = A_q
    mod = (_silu(c) @ w_mod).reshape(c.shape[0], 6, 1, -1)
    sa, ca, ga, sb, cb, gb = (mod[:, 0].clone(), mod[:, 1].clone(), mod[:, 2].clone(), mod[:, 3].clone(), mod[:, 4].clone(), mod[:, 5].clone())
    h = _layernorm(x, axis=-1) * (1 + ca) + sa
    x = x + ga * _A_ref(h, A_k, A_v, A_shift_k, A_ssm_k, A_ssm_D)
    h = _layernorm(x, axis=-1) * (1 + cb) + sb
    x = x + gb * _B_ref(h, B_w1, B_w2)
    return x
```

```python
import re
KN = "adaLN_cond__ssm_conv_h3__dense_activation_relu__prompt"

HEADER = """; Kernarg layout for this problem (112 bytes, ptrs only, base s[0:1]):
"""
ARG = dict(q=0, k=8, v=16, shift=24, ssmk=32, ssmD=40, bx=48, w1=56, w2=64, c=72, wmod=80, out=88, dbg=96, ws=104)
SIZE = dict(q=2048*512*2, k=2048*512*2, v=2048*512*2, shift=512*4*2, ssmk=512*2048*2, ssmD=512*2, w1=512*1792*2,
            w2=1792*512*2, c=512*2, wmod=512*3072*2, out=2048*512*2, dbg=256, ws=268435456)

class Asm:
    def __init__(self):
        self.lines = []
        self.kernels = []
        self.launches = []
        self.uid = 0
    def __call__(self, s=""):
        for l in s.split("\n"):
            l = l.strip()
            if not l: continue
            m = re.search(r"offset:(-?\d+|0x[0-9a-fA-F]+)", l)
            if m:
                o = int(m.group(1), 0)
                if l.startswith("buffer_"): assert 0 <= o < 4096, l
                elif l.startswith("global_"): assert -4096 <= o < 4096, l
                elif l.startswith("ds_"): assert 0 <= o < 65536, l
            self.lines.append("    " + l if not l.endswith(":") else l)
    def label(self, base="L"):
        self.uid += 1
        return f"{base}_{self.uid}"
    def begin_kernel(self, name):
        self.lines.append(f".globl {name}")
        self.lines.append(".p2align 8")
        self.lines.append(f".type {name},@function")
        self.lines.append(f"{name}:")
    def end_kernel(self, name, vgpr=256, sgpr=102, accum=None, wgid_y=False):
        if accum is None: accum = min(256, (vgpr + 3) // 4 * 4)
        self.kernels.append((name, vgpr, sgpr, accum, wgid_y))
    def launch(self, name, grid, block, lds=0):
        self.launches.append((name, grid, block, lds))
    def text(self, single=False):
        h = HEADER
        if single:
            name, g, b, lds = self.launches[0]
            h += f"; @launch grid=({g[0]},{g[1]},{g[2]}) block=({b[0]},{b[1]},{b[2]}) lds={lds}\n"
        else:
            for name, g, b, lds in self.launches:
                h += f"; @launch kernel={name} grid=({g[0]},{g[1]},{g[2]}) block=({b[0]},{b[1]},{b[2]}) lds={lds}\n"
        h += '.amdgcn_target "amdgcn-amd-amdhsa--gfx950"\n.text\n'
        h += "\n".join(self.lines) + "\n"
        h += '.section .rodata,"a"\n'
        for name, vgpr, sgpr, accum, wy in self.kernels:
            h += f".p2align 6\n.amdhsa_kernel {name}\n  .amdhsa_next_free_vgpr {vgpr}\n  .amdhsa_next_free_sgpr {sgpr}\n"
            h += f"  .amdhsa_accum_offset {accum}\n  .amdhsa_group_segment_fixed_size 0\n  .amdhsa_kernarg_size 112\n"
            h += "  .amdhsa_user_sgpr_count 2\n  .amdhsa_user_sgpr_kernarg_segment_ptr 1\n  .amdhsa_system_sgpr_workgroup_id_x 1\n"
            if wy: h += "  .amdhsa_system_sgpr_workgroup_id_y 1\n"
            h += "  .amdhsa_float_denorm_mode_32 3\n"
            h += ".end_amdhsa_kernel\n"
        return h

    def srd(self, s, arg, size=None, off=0):
        if size is None: size = SIZE[arg] - off
        self(f"s_load_dwordx2 s[{s}:{s+1}], s[0:1], {ARG[arg]}")
        self("s_waitcnt lgkmcnt(0)")
        if off:
            self(f"s_add_u32 s{s}, s{s}, {off}")
            self(f"s_addc_u32 s{s+1}, s{s+1}, 0")
        self(f"s_mov_b32 s{s+2}, {size}")
        self(f"s_mov_b32 s{s+3}, 0x20000")
    def rb(self, v, t=None):
        t = t or v
        self(f"v_cvt_pk_bf16_f32 {t}, {v}, {v}")
        self(f"v_lshlrev_b32 {v}, 16, {t}")
```

```python
import sys
from asmlib import *
A = Asm()
WS_MOD=0; WS_KV=0x10000; WS_Z=0x400000; WS_X1=0x800000; WS_H2=0xC00000; WS_HID=0x1000000
NEMPTY = int(sys.argv[2]) if len(sys.argv) > 2 else 0

def wave_sum(A, v, t, s0, s1):
    for m in (1,2,4,8,16):
        A(f"ds_swizzle_b32 {t}, {v} offset:{(m<<10)|0x1F}")
        A("s_waitcnt lgkmcnt(0)")
        A(f"v_add_f32 {v}, {v}, {t}")
    A("s_nop 1")
    A(f"v_readlane_b32 {s0}, {v}, 0")
    A(f"v_readlane_b32 {s1}, {v}, 32")
    A("s_nop 3")
    A(f"v_mov_b32 {v}, {s0}")
    A(f"v_add_f32 {v}, {s1}, {v}")

k="n1_mod_kernel"; A.begin_kernel(k)
A("s_cmp_ge_u32 s2, 12\ns_cbranch_scc1 n1_done")
A.srd(4,'c'); A.srd(8,'wmod'); A.srd(12,'ws',size=3072*4,off=WS_MOD)
A("""s_lshl_b32 s3, s2, 8
v_add_u32 v1, s3, v0
v_lshlrev_b32 v2, 1, v1
v_mov_b32 v3, 0
v_mov_b32 v4, 0
s_mov_b32 s16, 0
s_mov_b32 s17, 0
n1_loop:
buffer_load_ushort v5, v3, s[4:7], s16 offen
buffer_load_ushort v6, v2, s[8:11], s17 offen
s_waitcnt vmcnt(0)
v_lshlrev_b32 v5, 16, v5
v_lshlrev_b32 v6, 16, v6
v_mul_f32 v7, 0xbfb8aa3b, v5
v_exp_f32 v7, v7
s_nop 0
v_add_f32 v7, 1.0, v7
v_rcp_f32 v7, v7
s_nop 0
v_mul_f32 v7, v5, v7""")
A.rb("v7")
A("""v_fmac_f32 v4, v7, v6
s_add_u32 s16, s16, 2
s_add_u32 s17, s17, 6144
s_cmp_lt_u32 s16, 1024
s_cbranch_scc1 n1_loop""")
A.rb("v4")
A("""v_lshlrev_b32 v2, 2, v1
buffer_store_dword v4, v2, s[12:15], 0 offen
n1_done:
s_endpgm""")
A.end_kernel(k, vgpr=16, sgpr=32)

k="n2_kv_kernel"; A.begin_kernel(k)
A("s_cmp_ge_u32 s2, 4096\ns_cbranch_scc1 n2_done")
A.srd(4,'k'); A.srd(8,'v'); A.srd(12,'shift'); A.srd(16,'ws',size=2048*512*2,off=WS_KV)
A("""s_lshl_b32 s3, s2, 8
v_add_u32 v1, s3, v0
v_lshlrev_b32 v2, 1, v1
v_and_b32 v3, 511, v1
v_lshlrev_b32 v3, 3, v3
buffer_load_dwordx2 v[4:5], v3, s[12:15], 0 offen
buffer_load_ushort v6, v2, s[8:11], 0 offen
v_subrev_u32 v7, 3072, v2
buffer_load_ushort v8, v7, s[4:7], 0 offen
v_subrev_u32 v7, 2048, v2
buffer_load_ushort v9, v7, s[4:7], 0 offen
v_subrev_u32 v7, 1024, v2
buffer_load_ushort v10, v7, s[4:7], 0 offen
buffer_load_ushort v11, v2, s[4:7], 0 offen
s_waitcnt vmcnt(0)
v_lshlrev_b32 v6, 16, v6
v_lshlrev_b32 v8, 16, v8
v_lshlrev_b32 v9, 16, v9
v_lshlrev_b32 v10, 16, v10
v_lshlrev_b32 v11, 16, v11
v_lshlrev_b32 v12, 16, v4
v_and_b32 v13, 0xffff0000, v4
v_lshlrev_b32 v14, 16, v5
v_and_b32 v15, 0xffff0000, v5
v_mul_f32 v8, v8, v15""")
A.rb("v8")
A("v_mul_f32 v9, v9, v14"); A.rb("v9"); A("v_add_f32 v8, v8, v9"); A.rb("v8")
A("v_mul_f32 v10, v10, v13"); A.rb("v10"); A("v_add_f32 v8, v8, v10"); A.rb("v8")
A("v_mul_f32 v11, v11, v12"); A.rb("v11"); A("v_add_f32 v8, v8, v11"); A.rb("v8")
A("""v_mul_f32 v8, v8, v6
v_cvt_pk_bf16_f32 v8, v8, v8
buffer_store_short v8, v2, s[16:19], 0 offen
n2_done:
s_endpgm""")
A.end_kernel(k, vgpr=16, sgpr=32)

k="n3_conv_kernel"; A.begin_kernel(k)
A("s_cmp_ge_u32 s2, 4096\ns_cbranch_scc1 n3_done")
A.srd(4,'ws',size=2048*512*2,off=WS_KV); A.srd(8,'ssmk'); A.srd(12,'ssmD'); A.srd(16,'ws',size=2048*512*2,off=WS_Z)
A("""s_lshr_b32 s20, s2, 1
s_and_b32 s21, s2, 1
s_lshl_b32 s21, s21, 8
v_add_u32 v1, s21, v0
v_lshlrev_b32 v2, 1, v1
v_lshlrev_b32 v3, 12, v1
v_mov_b32 v4, 0
s_mov_b32 s22, 0
s_lshl_b32 s23, s20, 1
s_mov_b32 s24, 0
n3_loop:
buffer_load_ushort v5, v2, s[4:7], s22 offen
buffer_load_ushort v6, v3, s[8:11], s23 offen
s_waitcnt vmcnt(0)
v_lshlrev_b32 v5, 16, v5
v_lshlrev_b32 v6, 16, v6
v_fmac_f32 v4, v5, v6
s_add_u32 s22, s22, 1024
s_sub_u32 s23, s23, 2
s_add_u32 s24, s24, 1
s_cmp_le_u32 s24, s20
s_cbranch_scc1 n3_loop
buffer_load_ushort v7, v2, s[12:15], 0 offen
s_waitcnt vmcnt(0)
v_lshlrev_b32 v7, 16, v7
v_mul_f32 v5, v5, v7""")
A.rb("v5"); A.rb("v4")
A("""v_add_f32 v4, v4, v5
v_cvt_pk_bf16_f32 v4, v4, v4
s_lshl_b32 s22, s20, 10
buffer_store_short v4, v2, s[16:19], s22 offen
n3_done:
s_endpgm""")
A.end_kernel(k, vgpr=16, sgpr=32)

k="n4_rows_kernel"; A.begin_kernel(k)
A("s_cmp_ge_u32 s2, 512\ns_cbranch_scc1 n4_done")
A.srd(4,'q'); A.srd(8,'ws',size=2048*512*2,off=WS_Z); A.srd(12,'ws',size=3072*4,off=WS_MOD)
A.srd(16,'ws',size=2048*512*2,off=WS_X1); A.srd(20,'ws',size=2048*512*2,off=WS_H2)
A("""v_lshrrev_b32 v1, 6, v0
s_lshl_b32 s3, s2, 2
v_add_u32 v1, s3, v1
v_and_b32 v2, 63, v0
v_lshlrev_b32 v3, 10, v1
v_lshl_add_u32 v3, v2, 4, v3
v_lshlrev_b32 v4, 5, v2
buffer_load_dwordx4 v[8:11], v3, s[4:7], 0 offen
buffer_load_dwordx4 v[12:15], v3, s[8:11], 0 offen""")
for i in range(5):
    A(f"s_mov_b32 s26, {i*2048}")
    A(f"buffer_load_dwordx4 v[{64+8*i}:{64+8*i+3}], v4, s[12:15], s26 offen")
    A(f"buffer_load_dwordx4 v[{64+8*i+4}:{64+8*i+7}], v4, s[12:15], s26 offen offset:16")
A("s_waitcnt vmcnt(0)")
for i in range(4):
    A(f"v_lshlrev_b32 v{16+2*i}, 16, v{8+i}\nv_and_b32 v{17+2*i}, 0xffff0000, v{8+i}")
    A(f"v_lshlrev_b32 v{24+2*i}, 16, v{12+i}\nv_and_b32 v{25+2*i}, 0xffff0000, v{12+i}")
def ln(src, dst, sc, sh):
    A(f"v_mov_b32 v5, 0")
    for i in range(8): A(f"v_add_f32 v5, v5, v{src+i}")
    wave_sum(A, "v5", "v6", "s24", "s25")
    A("v_mul_f32 v5, 0x3b000000, v5")
    A("v_mov_b32 v7, 0")
    for i in range(8):
        A(f"v_sub_f32 v6, v{src+i}, v5\nv_fmac_f32 v7, v6, v6")
    wave_sum(A, "v7", "v6", "s24", "s25")
    A("v_mul_f32 v7, 0x3b000000, v7")
    A.rb("v5"); A.rb("v7")
    A("v_add_f32 v7, 0x3727c5ac, v7"); A.rb("v7")
    A("v_sqrt_f32 v7, v7\ns_nop 0"); A.rb("v7")
    A("v_rcp_f32 v7, v7\ns_nop 0")
    for i in range(8):
        A(f"v_sub_f32 v{dst+i}, v{src+i}, v5"); A.rb(f"v{dst+i}")
        A(f"v_mul_f32 v{dst+i}, v{dst+i}, v7"); A.rb(f"v{dst+i}")
        A(f"v_add_f32 v6, 1.0, v{sc+i}"); A.rb("v6")
        A(f"v_mul_f32 v{dst+i}, v{dst+i}, v6"); A.rb(f"v{dst+i}")
        A(f"v_add_f32 v{dst+i}, v{dst+i}, v{sh+i}"); A.rb(f"v{dst+i}")
ln(16, 32, 72, 64)
for i in range(8):
    A(f"v_mul_f32 v{32+i}, v{32+i}, v{24+i}"); A.rb(f"v{32+i}")
    A(f"v_mul_f32 v{32+i}, v{32+i}, v{80+i}"); A.rb(f"v{32+i}")
    A(f"v_add_f32 v{16+i}, v{16+i}, v{32+i}"); A.rb(f"v{16+i}")
for i in range(4):
    A(f"v_cvt_pk_bf16_f32 v{8+i}, v{16+2*i}, v{17+2*i}")
A("buffer_store_dwordx4 v[8:11], v3, s[16:19], 0 offen")
ln(16, 32, 96, 88)
for i in range(4):
    A(f"v_cvt_pk_bf16_f32 v{12+i}, v{32+2*i}, v{33+2*i}")
A("buffer_store_dwordx4 v[12:15], v3, s[20:23], 0 offen")
A("n4_done:\ns_endpgm")
A.end_kernel(k, vgpr=128, sgpr=32)

k="n5_gemm1_kernel"; A.begin_kernel(k)
A(f"s_cmp_ge_u32 s2, {7*2048}\ns_cbranch_scc1 n5_done")
A.srd(4,'ws',size=2048*512*2,off=WS_H2); A.srd(8,'w1'); A.srd(12,'ws',size=2048*1792*2,off=WS_HID)
A("""s_and_b32 s20, s2, 2047
s_lshr_b32 s21, s2, 11
s_lshl_b32 s21, s21, 8
v_add_u32 v1, s21, v0
v_lshlrev_b32 v2, 1, v1
v_mov_b32 v3, 0
v_mov_b32 v4, 0
s_lshl_b32 s22, s20, 10
s_mov_b32 s23, 0
s_mov_b32 s24, 0
n5_loop:
buffer_load_dwordx4 v[8:11], v3, s[4:7], s22 offen""")
for i in range(8):
    A(f"s_add_u32 s25, s23, {i*3584}\nbuffer_load_ushort v{16+i}, v2, s[8:11], s25 offen")
A("s_waitcnt vmcnt(0)")
for i in range(4):
    A(f"v_lshlrev_b32 v12, 16, v{8+i}\nv_and_b32 v13, 0xffff0000, v{8+i}")
    A(f"v_lshlrev_b32 v{16+2*i}, 16, v{16+2*i}\nv_lshlrev_b32 v{17+2*i}, 16, v{17+2*i}")
    A(f"v_fmac_f32 v4, v12, v{16+2*i}\nv_fmac_f32 v4, v13, v{17+2*i}")
A("""s_add_u32 s22, s22, 16
s_add_u32 s23, s23, 28672
s_add_u32 s24, s24, 8
s_cmp_lt_u32 s24, 512
s_cbranch_scc1 n5_loop
v_max_f32 v4, 0, v4
v_cvt_pk_bf16_f32 v4, v4, v4
s_mul_i32 s22, s20, 3584
buffer_store_short v4, v2, s[12:15], s22 offen
n5_done:
s_endpgm""")
A.end_kernel(k, vgpr=32, sgpr=32)

k="n6_gemm2_kernel"; A.begin_kernel(k)
A("s_cmp_ge_u32 s2, 4096\ns_cbranch_scc1 n6_done")
A.srd(4,'ws',size=2048*1792*2,off=WS_HID); A.srd(8,'w2'); A.srd(12,'out'); A.srd(16,'ws',size=2048*512*2,off=WS_X1); A.srd(28,'ws',size=3072*4,off=WS_MOD)
A("""s_lshr_b32 s20, s2, 1
s_and_b32 s21, s2, 1
s_lshl_b32 s21, s21, 8
v_add_u32 v1, s21, v0
v_lshlrev_b32 v2, 1, v1
v_mov_b32 v3, 0
v_mov_b32 v4, 0
s_mul_i32 s22, s20, 3584
s_mov_b32 s23, 0
s_mov_b32 s24, 0
n6_loop:
buffer_load_dwordx4 v[8:11], v3, s[4:7], s22 offen""")
for i in range(8):
    A(f"s_add_u32 s25, s23, {i*1024}\nbuffer_load_ushort v{16+i}, v2, s[8:11], s25 offen")
A("s_waitcnt vmcnt(0)")
for i in range(4):
    A(f"v_lshlrev_b32 v12, 16, v{8+i}\nv_and_b32 v13, 0xffff0000, v{8+i}")
    A(f"v_lshlrev_b32 v{16+2*i}, 16, v{16+2*i}\nv_lshlrev_b32 v{17+2*i}, 16, v{17+2*i}")
    A(f"v_fmac_f32 v4, v12, v{16+2*i}\nv_fmac_f32 v4, v13, v{17+2*i}")
A("""s_add_u32 s22, s22, 16
s_add_u32 s23, s23, 8192
s_add_u32 s24, s24, 8
s_cmp_lt_u32 s24, 1792
s_cbranch_scc1 n6_loop
s_lshl_b32 s22, s20, 10
buffer_load_ushort v5, v2, s[16:19], s22 offen
v_lshlrev_b32 v6, 2, v1
s_mov_b32 s26, 10240
buffer_load_dword v6, v6, s[28:31], s26 offen
s_waitcnt vmcnt(0)
v_lshlrev_b32 v5, 16, v5""")
A.rb("v4"); A("v_mul_f32 v4, v4, v6"); A.rb("v4")
A("""v_add_f32 v4, v4, v5
v_cvt_pk_bf16_f32 v4, v4, v4
buffer_store_short v4, v2, s[12:15], s22 offen
n6_done:
s_endpgm""")
A.end_kernel(k, vgpr=32, sgpr=40)

k="n7_empty_kernel"; A.begin_kernel(k); A("s_endpgm"); A.end_kernel(k, vgpr=8, sgpr=16)

A.launch("n1_mod_kernel",(12,1,1),(256,1,1))
A.launch("n2_kv_kernel",(4096,1,1),(256,1,1))
A.launch("n3_conv_kernel",(4096,1,1),(256,1,1))
A.launch("n4_rows_kernel",(512,1,1),(256,1,1))
A.launch("n5_gemm1_kernel",(7*2048,1,1),(256,1,1))
A.launch("n6_gemm2_kernel",(4096,1,1),(256,1,1))
for i in range(NEMPTY):
    A.launch("n7_empty_kernel",(256,1,1),(256,1,1))
open(sys.argv[1],"w").write(A.text())
```

```python
import sys
from asmlib import *
A = Asm()
import os
FAST=int(os.environ.get('FAST','0'))
def rbf(v):
    if not FAST: A.rb(v)

WS_MOD=0; WS_KV=0x10000; WS_Z=0x400000; WS_X1=0x800000; WS_H2=0xC00000; WS_HID=0x1000000
NEMPTY = int(sys.argv[2]) if len(sys.argv) > 2 else 0

def wave_sum(A, v, t, s0, s1):
    for m in (1,2,4,8,16):
        A(f"ds_swizzle_b32 {t}, {v} offset:{(m<<10)|0x1F}")
        A("s_waitcnt lgkmcnt(0)")
        A(f"v_add_f32 {v}, {v}, {t}")
    A("s_nop 1")
    A(f"v_readlane_b32 {s0}, {v}, 0")
    A(f"v_readlane_b32 {s1}, {v}, 32")
    A("s_nop 3")
    A(f"v_mov_b32 {v}, {s0}")
    A(f"v_add_f32 {v}, {s1}, {v}")

k="n1_mod_kernel"; A.begin_kernel(k)
A("s_cmp_ge_u32 s2, 12\ns_cbranch_scc1 n1_done")
A.srd(4,'c'); A.srd(8,'wmod'); A.srd(12,'ws',size=3072*4,off=WS_MOD)
A("""s_lshl_b32 s3, s2, 8
v_add_u32 v1, s3, v0
v_lshlrev_b32 v2, 1, v1
v_mov_b32 v3, 0
v_mov_b32 v4, 0
s_mov_b32 s16, 0
s_mov_b32 s17, 0
n1_loop:
buffer_load_ushort v5, v3, s[4:7], s16 offen
buffer_load_ushort v6, v2, s[8:11], s17 offen
s_waitcnt vmcnt(0)
v_lshlrev_b32 v5, 16, v5
v_lshlrev_b32 v6, 16, v6
v_mul_f32 v7, 0xbfb8aa3b, v5
v_exp_f32 v7, v7
s_nop 0
v_add_f32 v7, 1.0, v7
v_rcp_f32 v7, v7
s_nop 0
v_mul_f32 v7, v5, v7""")
A.rb("v7")
A("""v_fmac_f32 v4, v7, v6
s_add_u32 s16, s16, 2
s_add_u32 s17, s17, 6144
s_cmp_lt_u32 s16, 1024
s_cbranch_scc1 n1_loop""")
A.rb("v4")
A("""v_lshlrev_b32 v2, 2, v1
buffer_store_dword v4, v2, s[12:15], 0 offen
n1_done:
s_endpgm""")
A.end_kernel(k, vgpr=16, sgpr=32)

k="n2_kv_kernel"; A.begin_kernel(k)
A("s_cmp_ge_u32 s2, 4096\ns_cbranch_scc1 n2_done")
A.srd(4,'k'); A.srd(8,'v'); A.srd(12,'shift'); A.srd(16,'ws',size=2048*512*2,off=WS_KV)
A("""s_lshl_b32 s3, s2, 8
v_add_u32 v1, s3, v0
v_lshlrev_b32 v2, 1, v1
v_and_b32 v3, 511, v1
v_lshlrev_b32 v3, 3, v3
buffer_load_dwordx2 v[4:5], v3, s[12:15], 0 offen
buffer_load_ushort v6, v2, s[8:11], 0 offen
v_subrev_u32 v7, 3072, v2
buffer_load_ushort v8, v7, s[4:7], 0 offen
v_subrev_u32 v7, 2048, v2
buffer_load_ushort v9, v7, s[4:7], 0 offen
v_subrev_u32 v7, 1024, v2
buffer_load_ushort v10, v7, s[4:7], 0 offen
buffer_load_ushort v11, v2, s[4:7], 0 offen
s_waitcnt vmcnt(0)
v_lshlrev_b32 v6, 16, v6
v_lshlrev_b32 v8, 16, v8
v_lshlrev_b32 v9, 16, v9
v_lshlrev_b32 v10, 16, v10
v_lshlrev_b32 v11, 16, v11
v_lshlrev_b32 v12, 16, v4
v_and_b32 v13, 0xffff0000, v4
v_lshlrev_b32 v14, 16, v5
v_and_b32 v15, 0xffff0000, v5
v_mul_f32 v8, v8, v15""")
rbf("v8")
A("v_mul_f32 v9, v9, v14"); rbf("v9"); A("v_add_f32 v8, v8, v9"); rbf("v8")
A("v_mul_f32 v10, v10, v13"); rbf("v10"); A("v_add_f32 v8, v8, v10"); rbf("v8")
A("v_mul_f32 v11, v11, v12"); rbf("v11"); A("v_add_f32 v8, v8, v11"); rbf("v8")
A("""v_mul_f32 v8, v8, v6
v_cvt_pk_bf16_f32 v8, v8, v8
buffer_store_short v8, v2, s[16:19], 0 offen
n2_done:
s_endpgm""")
A.end_kernel(k, vgpr=16, sgpr=32)

k="n3_conv_kernel"; A.begin_kernel(k)
A("s_cmp_ge_u32 s2, 4096\ns_cbranch_scc1 n3_done")
A.srd(4,'ws',size=2048*512*2,off=WS_KV); A.srd(8,'ssmk'); A.srd(12,'ssmD'); A.srd(16,'ws',size=2048*512*2,off=WS_Z)
A("""s_lshr_b32 s20, s2, 1
s_and_b32 s21, s2, 1
s_lshl_b32 s21, s21, 8
v_add_u32 v1, s21, v0
v_lshlrev_b32 v2, 1, v1
v_lshlrev_b32 v3, 12, v1
v_mov_b32 v4, 0
s_mov_b32 s22, 0
s_lshl_b32 s23, s20, 1
s_mov_b32 s24, 0
n3_loop:
buffer_load_ushort v5, v2, s[4:7], s22 offen
buffer_load_ushort v6, v3, s[8:11], s23 offen
s_waitcnt vmcnt(0)
v_lshlrev_b32 v5, 16, v5
v_lshlrev_b32 v6, 16, v6
v_fmac_f32 v4, v5, v6
s_add_u32 s22, s22, 1024
s_sub_u32 s23, s23, 2
s_add_u32 s24, s24, 1
s_cmp_le_u32 s24, s20
s_cbranch_scc1 n3_loop
buffer_load_ushort v7, v2, s[12:15], 0 offen
s_waitcnt vmcnt(0)
v_lshlrev_b32 v7, 16, v7
v_mul_f32 v5, v5, v7""")
rbf("v5"); rbf("v4")
A("""v_add_f32 v4, v4, v5
v_cvt_pk_bf16_f32 v4, v4, v4
s_lshl_b32 s22, s20, 10
buffer_store_short v4, v2, s[16:19], s22 offen
n3_done:
s_endpgm""")
A.end_kernel(k, vgpr=16, sgpr=32)

k="n4_rows_kernel"; A.begin_kernel(k)
A("s_cmp_ge_u32 s2, 512\ns_cbranch_scc1 n4_done")
A.srd(4,'q'); A.srd(8,'ws',size=2048*512*2,off=WS_Z); A.srd(12,'ws',size=3072*4,off=WS_MOD)
A.srd(16,'ws',size=2048*512*2,off=WS_X1); A.srd(20,'ws',size=2048*512*2,off=WS_H2)
A("""v_lshrrev_b32 v1, 6, v0
s_lshl_b32 s3, s2, 2
v_add_u32 v1, s3, v1
v_and_b32 v2, 63, v0
v_lshlrev_b32 v3, 10, v1
v_lshl_add_u32 v3, v2, 4, v3
v_lshlrev_b32 v4, 5, v2
buffer_load_dwordx4 v[8:11], v3, s[4:7], 0 offen
buffer_load_dwordx4 v[12:15], v3, s[8:11], 0 offen""")
for i in range(5):
    A(f"s_mov_b32 s26, {i*2048}")
    A(f"buffer_load_dwordx4 v[{64+8*i}:{64+8*i+3}], v4, s[12:15], s26 offen")
    A(f"buffer_load_dwordx4 v[{64+8*i+4}:{64+8*i+7}], v4, s[12:15], s26 offen offset:16")
A("s_waitcnt vmcnt(0)")
for i in range(4):
    A(f"v_lshlrev_b32 v{16+2*i}, 16, v{8+i}\nv_and_b32 v{17+2*i}, 0xffff0000, v{8+i}")
    A(f"v_lshlrev_b32 v{24+2*i}, 16, v{12+i}\nv_and_b32 v{25+2*i}, 0xffff0000, v{12+i}")
def ln(src, dst, sc, sh):
    A(f"v_mov_b32 v5, 0")
    for i in range(8): A(f"v_add_f32 v5, v5, v{src+i}")
    wave_sum(A, "v5", "v6", "s24", "s25")
    A("v_mul_f32 v5, 0x3b000000, v5")
    A("v_mov_b32 v7, 0")
    for i in range(8):
        A(f"v_sub_f32 v6, v{src+i}, v5\nv_fmac_f32 v7, v6, v6")
    wave_sum(A, "v7", "v6", "s24", "s25")
    A("v_mul_f32 v7, 0x3b000000, v7")
    rbf("v5"); rbf("v7")
    A("v_add_f32 v7, 0x3727c5ac, v7"); rbf("v7")
    A("v_sqrt_f32 v7, v7\ns_nop 0"); rbf("v7")
    A("v_rcp_f32 v7, v7\ns_nop 0")
    for i in range(8):
        A(f"v_sub_f32 v{dst+i}, v{src+i}, v5"); rbf(f"v{dst+i}")
        A(f"v_mul_f32 v{dst+i}, v{dst+i}, v7"); rbf(f"v{dst+i}")
        A(f"v_add_f32 v6, 1.0, v{sc+i}"); rbf("v6")
        A(f"v_mul_f32 v{dst+i}, v{dst+i}, v6"); rbf(f"v{dst+i}")
        A(f"v_add_f32 v{dst+i}, v{dst+i}, v{sh+i}"); rbf(f"v{dst+i}")
ln(16, 32, 72, 64)
for i in range(8):
    A(f"v_mul_f32 v{32+i}, v{32+i}, v{24+i}"); rbf(f"v{32+i}")
    A(f"v_mul_f32 v{32+i}, v{32+i}, v{80+i}"); rbf(f"v{32+i}")
    A(f"v_add_f32 v{16+i}, v{16+i}, v{32+i}"); A.rb(f"v{16+i}")
for i in range(4):
    A(f"v_cvt_pk_bf16_f32 v{8+i}, v{16+2*i}, v{17+2*i}")
A("buffer_store_dwordx4 v[8:11], v3, s[16:19], 0 offen")
ln(16, 32, 96, 88)
for i in range(4):
    A(f"v_cvt_pk_bf16_f32 v{12+i}, v{32+2*i}, v{33+2*i}")
A("buffer_store_dwordx4 v[12:15], v3, s[20:23], 0 offen")
A("n4_done:\ns_endpgm")
A.end_kernel(k, vgpr=128, sgpr=32)

k="n5_gemm1_kernel"; A.begin_kernel(k)
A(f"s_cmp_ge_u32 s2, {7*2048}\ns_cbranch_scc1 n5_done")
A.srd(4,'ws',size=2048*512*2,off=WS_H2); A.srd(8,'w1'); A.srd(12,'ws',size=2048*1792*2,off=WS_HID)
A("""s_and_b32 s20, s2, 2047
s_lshr_b32 s21, s2, 11
s_lshl_b32 s21, s21, 8
v_add_u32 v1, s21, v0
v_lshlrev_b32 v2, 1, v1
v_mov_b32 v3, 0
v_mov_b32 v4, 0
s_lshl_b32 s22, s20, 10
s_mov_b32 s23, 0
s_mov_b32 s24, 0
n5_loop:
buffer_load_dwordx4 v[8:11], v3, s[4:7], s22 offen""")
for i in range(8):
    A(f"s_add_u32 s25, s23, {i*3584}\nbuffer_load_ushort v{16+i}, v2, s[8:11], s25 offen")
A("s_waitcnt vmcnt(0)")
for i in range(4):
    A(f"v_lshlrev_b32 v12, 16, v{8+i}\nv_and_b32 v13, 0xffff0000, v{8+i}")
    A(f"v_lshlrev_b32 v{16+2*i}, 16, v{16+2*i}\nv_lshlrev_b32 v{17+2*i}, 16, v{17+2*i}")
    A(f"v_fmac_f32 v4, v12, v{16+2*i}\nv_fmac_f32 v4, v13, v{17+2*i}")
A("""s_add_u32 s22, s22, 16
s_add_u32 s23, s23, 28672
s_add_u32 s24, s24, 8
s_cmp_lt_u32 s24, 512
s_cbranch_scc1 n5_loop
v_max_f32 v4, 0, v4
v_cvt_pk_bf16_f32 v4, v4, v4
s_mul_i32 s22, s20, 3584
buffer_store_short v4, v2, s[12:15], s22 offen
n5_done:
s_endpgm""")
A.end_kernel(k, vgpr=32, sgpr=32)

k="n6_gemm2_kernel"; A.begin_kernel(k)
A("s_cmp_ge_u32 s2, 4096\ns_cbranch_scc1 n6_done")
A.srd(4,'ws',size=2048*1792*2,off=WS_HID); A.srd(8,'w2'); A.srd(12,'out'); A.srd(16,'ws',size=2048*512*2,off=WS_X1); A.srd(28,'ws',size=3072*4,off=WS_MOD)
A("""s_lshr_b32 s20, s2, 1
s_and_b32 s21, s2, 1
s_lshl_b32 s21, s21, 8
v_add_u32 v1, s21, v0
v_lshlrev_b32 v2, 1, v1
v_mov_b32 v3, 0
v_mov_b32 v4, 0
s_mul_i32 s22, s20, 3584
s_mov_b32 s23, 0
s_mov_b32 s24, 0
n6_loop:
buffer_load_dwordx4 v[8:11], v3, s[4:7], s22 offen""")
for i in range(8):
    A(f"s_add_u32 s25, s23, {i*1024}\nbuffer_load_ushort v{16+i}, v2, s[8:11], s25 offen")
A("s_waitcnt vmcnt(0)")
for i in range(4):
    A(f"v_lshlrev_b32 v12, 16, v{8+i}\nv_and_b32 v13, 0xffff0000, v{8+i}")
    A(f"v_lshlrev_b32 v{16+2*i}, 16, v{16+2*i}\nv_lshlrev_b32 v{17+2*i}, 16, v{17+2*i}")
    A(f"v_fmac_f32 v4, v12, v{16+2*i}\nv_fmac_f32 v4, v13, v{17+2*i}")
A("""s_add_u32 s22, s22, 16
s_add_u32 s23, s23, 8192
s_add_u32 s24, s24, 8
s_cmp_lt_u32 s24, 1792
s_cbranch_scc1 n6_loop
s_lshl_b32 s22, s20, 10
buffer_load_ushort v5, v2, s[16:19], s22 offen
v_lshlrev_b32 v6, 2, v1
s_mov_b32 s26, 10240
buffer_load_dword v6, v6, s[28:31], s26 offen
s_waitcnt vmcnt(0)
v_lshlrev_b32 v5, 16, v5""")
rbf("v4"); A("v_mul_f32 v4, v4, v6"); rbf("v4")
A("""v_add_f32 v4, v4, v5
v_cvt_pk_bf16_f32 v4, v4, v4
buffer_store_short v4, v2, s[12:15], s22 offen
n6_done:
s_endpgm""")
A.end_kernel(k, vgpr=32, sgpr=40)

k="n7_empty_kernel"; A.begin_kernel(k); A("s_endpgm"); A.end_kernel(k, vgpr=8, sgpr=16)

NFIRST = int(sys.argv[3]) if len(sys.argv) > 3 else 0
for i in range(NFIRST):
    A.launch("n7_empty_kernel",(256,1,1),(256,1,1))
A.launch("n1_mod_kernel",(12,1,1),(256,1,1))
A.launch("n2_kv_kernel",(4096,1,1),(256,1,1))
A.launch("n3_conv_kernel",(4096,1,1),(256,1,1))
A.launch("n4_rows_kernel",(512,1,1),(256,1,1))
A.launch("n5_gemm1_kernel",(7*2048,1,1),(256,1,1))
A.launch("n6_gemm2_kernel",(4096,1,1),(256,1,1))
for i in range(NEMPTY):
    A.launch("n7_empty_kernel",(256,1,1),(256,1,1))
open(sys.argv[1],"w").write(A.text())
```

```python
import re
KN = "adaLN_cond__ssm_conv_h3__dense_activation_relu__prompt"

HEADER = """; Kernarg layout for this problem (112 bytes, ptrs only, base s[0:1]):
"""
ARG = dict(q=0, k=8, v=16, shift=24, ssmk=32, ssmD=40, bx=48, w1=56, w2=64, c=72, wmod=80, out=88, dbg=96, ws=104)
SIZE = dict(q=2048*512*2, k=2048*512*2, v=2048*512*2, shift=512*4*2, ssmk=512*2048*2, ssmD=512*2, w1=512*1792*2,
            w2=1792*512*2, c=512*2, wmod=512*3072*2, out=2048*512*2, dbg=256, ws=268435456)

TRANS = ("v_exp_f32","v_log_f32","v_rcp_f32","v_rsq_f32","v_sqrt_f32","v_sin_f32","v_cos_f32","v_rcp_iflag_f32",
         "v_exp_f16","v_log_f16","v_rcp_f16","v_rsq_f16","v_sqrt_f16")

def regs_of(op):
    op = op.strip()
    neg = op.lstrip("-")
    if neg.startswith("abs(") or neg.startswith("|"): neg = neg.strip("abs()|")
    op = neg
    m = re.fullmatch(r"([vsa])(\d+)", op)
    if m: return {(m.group(1), int(m.group(2)))}
    m = re.fullmatch(r"([vsa])\[(\d+):(\d+)\]", op)
    if m: return {(m.group(1), i) for i in range(int(m.group(2)), int(m.group(3)) + 1)}
    if op in ("vcc",): return {("s", 106), ("s", 107)}
    if op == "vcc_lo": return {("s", 106)}
    if op == "vcc_hi": return {("s", 107)}
    if op == "exec": return {("s", 126), ("s", 127)}
    if op == "m0": return {("s", 124)}
    return set()

class Ins:
    def __init__(self, text):
        self.text = text
        t = text.split(";")[0].strip()
        self.label = t.endswith(":")
        self.dir = t.startswith(".")
        if self.label or self.dir or not t:
            self.mn = None; return
        parts = t.split(None, 1)
        self.mn = parts[0]
        rest = parts[1] if len(parts) > 1 else ""
        ops = []; depth = 0; cur = ""
        for ch in rest:
            if ch == "[": depth += 1
            if ch == "]": depth -= 1
            if ch == "," and depth == 0: ops.append(cur.strip()); cur = ""
            else: cur += ch
        if cur.strip(): ops.append(cur.strip())
        mods = ""
        if ops:
            sp = ops[-1].split(None, 1)
            if len(sp) > 1: ops[-1] = sp[0]; mods = sp[1]
        self.ops = ops; self.mods = mods
        mn = self.mn
        self.is_mfma = mn.startswith("v_mfma") or mn.startswith("v_smfmac")
        self.is_valu = mn.startswith("v_") and not self.is_mfma
        self.is_salu = mn.startswith("s_")
        self.is_vmem = mn.startswith("buffer_") or mn.startswith("global_") or mn.startswith("flat_")
        self.is_ds = mn.startswith("ds_")
        self.is_trans = any(mn.startswith(x) for x in TRANS)
        self.is_dpp = bool(re.search(r"(row_shr|row_shl|row_ror|row_bcast|wave_sh|wave_ro|quad_perm|row_mirror|row_half_mirror|row_newbcast|row_share)", mods)) or mn.endswith("_dpp")
        self.is_permlane = mn.startswith("v_permlane")
        self.is_readlane = mn.startswith("v_readlane") or mn.startswith("v_readfirstlane") or mn.startswith("v_writelane")
        w = set(); r = set()
        R = [regs_of(o) for o in ops]
        if self.is_mfma:
            w = R[0]; self.srcA = R[1]; self.srcB = R[2]; self.srcC = R[3]; r = R[1] | R[2] | R[3]
            self.passes = 8 if "32x32" in mn else 4
            if "32x32x64" in mn or "16x16x128" in mn: self.passes *= 2
            if "f32_32x32x2_f32" in mn: self.passes = 16
            if "f32_16x16x4_f32" in mn: self.passes = 8
        elif self.is_valu:
            if mn.startswith("v_cmpx"):
                w = R[0] | regs_of("exec"); r = set().union(*R[1:])
            elif mn.startswith("v_cmp"):
                w = R[0]; r = set().union(*R[1:])
            elif mn.startswith("v_permlane32_swap") or mn.startswith("v_permlane16_swap"):
                w = R[0] | R[1]; r = R[0] | R[1]
            elif re.match(r"v_(add|sub|subrev)_co_u32", mn):
                w = R[0] | R[1]; r = set().union(*R[2:])
            elif re.match(r"v_(addc|subb|subbrev)_co_u32", mn):
                w = R[0] | R[1]; r = set().union(*R[2:])
            elif mn.startswith("v_nop"):
                pass
            else:
                w = R[0]; r = set().union(*R[1:]) if len(R) > 1 else set()
                if mn.startswith("v_fmac") or mn.startswith("v_dot2c") or mn.startswith("v_mac") or mn.startswith("v_pk_fmac") or mn.startswith("v_writelane") or self.is_dpp or "sdwa" in mn or mn.startswith("v_cvt_sr") or mn.startswith("v_fmamk") :
                    r |= R[0]
                if mn.startswith("v_cndmask") and len(ops) == 3: r |= regs_of("vcc")
                if mn.startswith("v_div_fmas"): r |= regs_of("vcc")
        elif self.is_vmem:
            if "load" in mn and " lds" not in (" " + mods) and not mn.startswith("global_load_lds"):
                w = R[0]; r = set().union(*R[1:])
            elif "atomic" in mn and "sc0" in mods:
                w = R[0]; r = set().union(*R)
            else:
                r = set().union(*R) if R else set()
            if " lds" in (" " + mods) or mn.startswith("global_load_lds"): r |= regs_of("m0")
            self.wide_store = ("store" in mn) and (mn.endswith("x4") or mn.endswith("x3"))
            self.store_data = set()
            if "store" in mn:
                self.store_data = R[0] if mn.startswith("buffer_") else R[1]
        elif self.is_ds:
            if mn.startswith("ds_read") or mn.startswith("ds_bpermute") or mn.startswith("ds_permute") or mn.startswith("ds_swizzle") or "_rtn" in mn:
                w = R[0]; r = set().union(*R[1:])
            else:
                r = set().union(*R)
        elif self.is_salu:
            if mn.startswith("s_cmp") or mn.startswith("s_cbranch") or mn.startswith("s_branch") or mn in ("s_waitcnt","s_barrier","s_nop","s_endpgm","s_sleep","s_setprio") or mn.startswith("s_bitcmp"):
                r = set().union(*R) if R else set()
            else:
                w = R[0] if R else set(); r = set().union(*R[1:]) if len(R) > 1 else set()
                if "saveexec" in mn: w = w | regs_of("exec"); r |= regs_of("exec")
        self.w = w; self.r = r
    def states(self):
        if self.mn == "s_nop": return int(self.ops[0], 0) + 1
        return 1

def isv(S): return {x for x in S if x[0] in "va"}
def iss(S): return {x for x in S if x[0] == "s"}

def need(p, c):
    n = 0
    if p.is_valu:
        pv = isv(p.w); ps = iss(p.w)
        if pv:
            if c.is_valu and c.is_dpp and (pv & c.r): n = max(n, 2)
            if c.is_valu and c.is_readlane and (pv & c.r) and not c.mn.startswith("v_writelane"): n = max(n, 1)
            if c.is_valu and c.is_permlane and (pv & c.r): n = max(n, 2)
            if c.is_mfma and (pv & c.r): n = max(n, 2)
            if p.is_trans and c.is_valu and not c.is_trans and (pv & c.r): n = max(n, 1)
            if p.is_trans and (c.is_mfma or c.is_vmem or c.is_ds) and (pv & c.r): n = max(n, 1)
        if ps:
            if c.is_vmem and (ps & c.r): n = max(n, 5)
            if c.is_valu and (ps & c.r): n = max(n, 4 if c.is_readlane else 2)
            if c.is_salu and (ps & c.r): n = max(n, 4)
            if c.is_mfma and (ps & regs_of("exec")): n = max(n, 4)
            if (ps & regs_of("exec")) and c.is_valu and c.is_dpp: n = max(n, 5)
            if (ps & regs_of("exec")) and c.is_valu and (c.is_readlane or c.is_permlane): n = max(n, 4)
    if p.is_mfma:
        D = p.w
        big = {2: 5, 4: 8, 8: 12, 16: 20}[p.passes]
        if c.is_mfma:
            if D & (c.srcA | c.srcB): n = max(n, big)
            if D & c.srcC:
                if not (c.srcC == D and c.passes == p.passes): n = max(n, {2: 4, 4: 6, 8: 10, 16: 18}[p.passes])
            elif D & c.w: n = max(n, {2: 4, 4: 6, 8: 10, 16: 18}[p.passes])
        elif c.is_valu or c.is_vmem or c.is_ds:
            if D & (c.r | c.w): n = max(n, big)
        if c.is_valu and (p.srcC & c.w): n = max(n, {2: 1, 4: 3, 8: 7, 16: 15}[p.passes])
    if p.is_vmem and getattr(p, "wide_store", False):
        if (c.is_valu or c.is_mfma) and (p.store_data & c.w): n = max(n, 2)
        elif (p.store_data & c.w): n = max(n, 1)
    if p.is_salu and (regs_of("m0") & p.w):
        if (c.is_vmem and (regs_of("m0") & c.r)): n = max(n, 1)
    return n

def pad_hazards(lines, window=24):
    out = []; hist = []
    npad = 0
    for text in lines:
        ins = Ins(text)
        if ins.mn is None:
            out.append(text); continue
        req = 0
        dist = 0
        for p in reversed(hist):
            k = need(p, ins)
            if k > dist: req = max(req, k - dist)
            dist += p.states()
            if dist > window: break
        while req > 0:
            k = min(req, 16)
            nop = Ins(f"s_nop {k-1}")
            out.append(f"    s_nop {k-1}"); hist.append(nop); req -= k; npad += 1
        out.append(text); hist.append(ins)
        if len(hist) > 64: hist = hist[-40:]
    return out, npad

class Asm:
    def __init__(self):
        self.lines = []
        self.kernels = []
        self.launches = []
        self.uid = 0
    def __call__(self, s=""):
        for l in s.split("\n"):
            l = l.strip()
            if not l or l.startswith(";"): continue
            m = re.search(r"offset:(-?\d+|0x[0-9a-fA-F]+)", l)
            if m:
                o = int(m.group(1), 0)
                if l.startswith("buffer_"): assert 0 <= o < 4096, l
                elif l.startswith("global_"): assert -4096 <= o < 4096, l
                elif l.startswith("ds_"): assert 0 <= o < 65536, l
            m = re.search(r"offset[01]:(\d+)", l)
            if m: assert int(m.group(1)) < 256, l
            self.lines.append(l if l.split(";")[0].strip().endswith(":") else "    " + l)
    def label(self, base="L"):
        self.uid += 1
        return f"{base}_{self.uid}"
    def begin_kernel(self, name):
        self.lines.append(f".globl {name}")
        self.lines.append(".p2align 8")
        self.lines.append(f".type {name},@function")
        self.lines.append(f"{name}:")
    def end_kernel(self, name, vgpr=256, sgpr=102, accum=None, wgid_y=False):
        if accum is None: accum = min(256, (vgpr + 3) // 4 * 4)
        self.kernels.append((name, vgpr, sgpr, accum, wgid_y))
    def launch(self, name, grid, block, lds=0):
        self.launches.append((name, grid, block, lds))
    def text(self, single=False, pad=True):
        h = HEADER
        if single:
            name, g, b, lds = self.launches[0]
            h += f"; @launch grid=({g[0]},{g[1]},{g[2]}) block=({b[0]},{b[1]},{b[2]}) lds={lds}\n"
        else:
            for name, g, b, lds in self.launches:
                h += f"; @launch kernel={name} grid=({g[0]},{g[1]},{g[2]}) block=({b[0]},{b[1]},{b[2]}) lds={lds}\n"
        h += '.amdgcn_target "amdgcn-amd-amdhsa--gfx950"\n.text\n'
        lines = self.lines
        if pad:
            lines, n = pad_hazards(lines)
        h += "\n".join(lines) + "\n"
        h += '.section .rodata,"a"\n'
        for name, vgpr, sgpr, accum, wy in self.kernels:
            h += f".p2align 6\n.amdhsa_kernel {name}\n  .amdhsa_next_free_vgpr {vgpr}\n  .amdhsa_next_free_sgpr {sgpr}\n"
            h += f"  .amdhsa_accum_offset {accum}\n  .amdhsa_group_segment_fixed_size 0\n  .amdhsa_kernarg_size 112\n"
            h += "  .amdhsa_user_sgpr_count 2\n  .amdhsa_user_sgpr_kernarg_segment_ptr 1\n  .amdhsa_system_sgpr_workgroup_id_x 1\n"
            if wy: h += "  .amdhsa_system_sgpr_workgroup_id_y 1\n"
            h += "  .amdhsa_float_denorm_mode_32 3\n"
            h += ".end_amdhsa_kernel\n"
        return h

    def srd(self, s, arg, size=None, off=0):
        if size is None: size = SIZE[arg] - off
        self(f"s_load_dwordx2 s[{s}:{s+1}], s[0:1], {ARG[arg]}")
        self("s_waitcnt lgkmcnt(0)")
        if off:
            self(f"s_add_u32 s{s}, s{s}, {off}")
            self(f"s_addc_u32 s{s+1}, s{s+1}, 0")
        self(f"s_mov_b32 s{s+2}, {size}")
        self(f"s_mov_b32 s{s+3}, 0x20000")
    def srd_from(self, s, pair, size, off=0):
        if off:
            self(f"s_add_u32 s{s}, s{pair}, {off}")
            self(f"s_addc_u32 s{s+1}, s{pair+1}, 0")
        else:
            if s != pair:
                self(f"s_mov_b32 s{s}, s{pair}")
                self(f"s_mov_b32 s{s+1}, s{pair+1}")
        self(f"s_mov_b32 s{s+2}, {size}")
        self(f"s_mov_b32 s{s+3}, 0x20000")
    def rb(self, v, t=None):
        t = t or v
        self(f"v_cvt_pk_bf16_f32 {t}, {v}, {v}")
        self(f"v_lshlrev_b32 {v}, 16, {t}")
```

```python
import sys, os
from asmlib import *

WS_KVT=0x000000; WS_QT=0x200000; WS_X1T=0x400000; WS_R1=0x600000; WS_MR1=0x602000
WS_MOD=0x610000; WS_C12P=0x620000; WS_W1F=0x700000; WS_W2F=0x900000; WS_HID=0xB00000

def dpp_wave_sum(A, regs):
    for ctrl in ("row_shr:1","row_shr:2","row_shr:4","row_shr:8"):
        for r in regs:
            A(f"v_add_f32_dpp {r}, {r}, {r} {ctrl} row_mask:0xf bank_mask:0xf bound_ctrl:0")
    for r in regs: A(f"v_add_f32_dpp {r}, {r}, {r} row_bcast:15 row_mask:0xa bank_mask:0xf")
    for r in regs: A(f"v_add_f32_dpp {r}, {r}, {r} row_bcast:31 row_mask:0xc bank_mask:0xf")

def k1(A):
    k = "k1_prep_kernel"; A.begin_kernel(k)
    A("""
    s_cmp_ge_u32 s2, 304
    s_cbranch_scc1 k1_done
    s_load_dwordx8 s[4:11], s[0:1], 0      ; q k v shift
    s_load_dwordx2 s[12:13], s[0:1], 32    ; ssmk
    s_load_dwordx4 s[16:19], s[0:1], 72    ; c wmod
    s_load_dwordx2 s[20:21], s[0:1], 104   ; ws
    s_cmp_ge_u32 s2, 256
    s_cbranch_scc1 k1_mod
    s_and_b32 s56, s2, 7                   ; x
    s_lshr_b32 s57, s2, 3                  ; j
    s_lshr_b32 s58, s57, 3
    s_lshl_b32 s59, s56, 2
    s_add_u32 s58, s58, s59                ; rb
    s_and_b32 s59, s57, 7                  ; cb
    s_lshl_b32 s60, s58, 6                 ; row0
    s_lshl_b32 s61, s59, 7
    v_and_b32 v1, 31, v0                   ; cp
    v_lshrrev_b32 v2, 5, v0                ; rg
    v_lshlrev_b32 v3, 3, v2
    v_add_u32 v3, s60, v3
    v_lshlrev_b32 v4, 10, v3
    v_lshl_add_u32 v4, v1, 2, v4
    v_add_u32 v4, s61, v4                  ; vbase
    v_subrev_u32 v5, 3072, v4              ; vbase - 3072
    ; shift offset: (64cb + 2cp)*8 = cb*512 + cp*16
    s_lshl_b32 s62, s59, 9
    v_lshlrev_b32 v6, 4, v1
    v_add_u32 v6, s62, v6
    v_lshrrev_b32 v7, 6, v0
    v_and_b32 v35, 63, v0
    s_lshl_b32 s63, s56, 8
    s_lshl_b32 s64, s57, 3
    s_add_u32 s63, s63, s64
    v_lshl_add_u32 v7, v7, 1, s63          ; row
    v_lshlrev_b32 v118, 2, v7
    v_lshlrev_b32 v7, 10, v7
    v_lshl_add_u32 v7, v35, 4, v7
    s_lshl_b32 s65, s2, 13
    v_lshlrev_b32 v119, 4, v0
    v_add_u32 v119, s65, v119
    s_movk_i32 s66, 0x1000
    s_waitcnt lgkmcnt(0)
    """)
    A.srd_from(24, 4, SIZE['q']); A.srd_from(28, 6, SIZE['k']); A.srd_from(32, 8, SIZE['v']); A.srd_from(36, 10, SIZE['shift'])
    A("buffer_load_dwordx4 v[36:39], v6, s[36:39], 0 offen")
    for i in range(3): A(f"buffer_load_dword v{8+i}, v5, s[28:31], 0 offen offset:{i*1024}")
    for i in range(8):
        so = "0" if i < 4 else "s66"
        A(f"buffer_load_dword v{11+i}, v4, s[28:31], {so} offen offset:{(i%4)*1024}")
    for i in range(8):
        so = "0" if i < 4 else "s66"
        A(f"buffer_load_dword v{19+i}, v4, s[32:35], {so} offen offset:{(i%4)*1024}")
    for i in range(8):
        so = "0" if i < 4 else "s66"
        A(f"buffer_load_dword v{27+i}, v4, s[24:27], {so} offen offset:{(i%4)*1024}")
    A("buffer_load_dwordx4 v[40:43], v7, s[24:27], 0 offen")
    A("buffer_load_dwordx4 v[44:47], v7, s[24:27], 0 offen offset:1024")
    A.srd_from(52, 12, SIZE['ssmk'])
    A("buffer_load_dwordx4 v[48:51], v119, s[52:55], 0 offen")
    A("buffer_load_dwordx4 v[52:55], v119, s[52:55], s66 offen")
    A.srd_from(40, 20, 2048*512*2, WS_KVT); A.srd_from(44, 20, 2048*512*2, WS_QT); A.srd_from(48, 20, 0x4000, WS_R1)
    A("""
    s_lshl_b32 s62, s59, 18
    v_lshlrev_b32 v6, 13, v1
    v_add_u32 v6, s62, v6
    v_lshl_add_u32 v6, v3, 1, v6
    s_mov_b32 s67, 0x05040100
    s_mov_b32 s68, 0x07060302
    """)
    A("s_waitcnt vmcnt(20)")
    A("""
    v_lshlrev_b32 v94, 16, v36
    v_lshlrev_b32 v95, 16, v38
    v_and_b32 v96, 0xffff0000, v36
    v_and_b32 v97, 0xffff0000, v38
    v_lshlrev_b32 v98, 16, v37
    v_lshlrev_b32 v99, 16, v39
    v_and_b32 v100, 0xffff0000, v37
    v_and_b32 v101, 0xffff0000, v39
    """)
    for i in range(11):
        A(f"v_lshlrev_b32 v{56+2*i}, 16, v{8+i}\nv_and_b32 v{57+2*i}, 0xffff0000, v{8+i}")
    def P(r): return f"v[{r}:{r+1}]"
    for r in range(8):
        d = 102 + 2*r
        A(f"v_pk_mul_f32 {P(d)}, {P(56+2*(r+3))}, {P(94)}")
        A(f"v_pk_fma_f32 {P(d)}, {P(56+2*(r+2))}, {P(96)}, {P(d)}")
        A(f"v_pk_fma_f32 {P(d)}, {P(56+2*(r+1))}, {P(98)}, {P(d)}")
        A(f"v_pk_fma_f32 {P(d)}, {P(56+2*r)}, {P(100)}, {P(d)}")
    A("s_waitcnt vmcnt(12)")
    for i in range(8):
        A(f"v_lshlrev_b32 v{78+2*i}, 16, v{19+i}\nv_and_b32 v{79+2*i}, 0xffff0000, v{19+i}")
    for r in range(8):
        A(f"v_pk_mul_f32 {P(102+2*r)}, {P(102+2*r)}, {P(78+2*r)}")
    for e in range(2):
        for d,(a,b) in enumerate(((3,2),(1,0),(7,6),(5,4))):
            A(f"v_cvt_pk_bf16_f32 v{56+4*e+d}, v{102+2*a+e}, v{102+2*b+e}")
    A("buffer_store_dwordx4 v[56:59], v6, s[40:43], 0 offen")
    A("buffer_store_dwordx4 v[60:63], v6, s[40:43], s66 offen")
    A("s_waitcnt vmcnt(6)")
    for e in range(2):
        sel = "s67" if e == 0 else "s68"
        for d in range(4):
            A(f"v_perm_b32 v{64+4*e+d}, v{27+2*d+1}, v{27+2*d}, {sel}")
    A("buffer_store_dwordx4 v[64:67], v6, s[44:47], 0 offen")
    A("buffer_store_dwordx4 v[68:71], v6, s[44:47], s66 offen")
    A("s_waitcnt vmcnt(6)")
    A("s_mov_b32 s69, 0x3f803f80")
    A("v_mov_b32 v72, 0\nv_mov_b32 v73, 0\nv_mov_b32 v74, 0\nv_mov_b32 v75, 0")
    for i in range(4):
        A(f"v_dot2c_f32_bf16 v72, s69, v{40+i}")
        A(f"v_dot2c_f32_bf16 v73, v{40+i}, v{40+i}")
        A(f"v_dot2c_f32_bf16 v74, s69, v{44+i}")
        A(f"v_dot2c_f32_bf16 v75, v{44+i}, v{44+i}")
    dpp_wave_sum(A, ["v72","v73","v74","v75"])
    A("""
    v_mul_f32 v72, 0x3b000000, v72
    v_mul_f32 v74, 0x3b000000, v74
    v_mul_f32 v73, 0x3b000000, v73
    v_mul_f32 v75, 0x3b000000, v75
    v_fma_f32 v73, -v72, v72, v73
    v_fma_f32 v75, -v74, v74, v75
    v_max_f32 v73, 0, v73
    v_max_f32 v75, 0, v75
    v_add_f32 v73, 0x3727c5ac, v73
    v_add_f32 v75, 0x3727c5ac, v75
    v_rsq_f32 v76, v73
    v_rsq_f32 v77, v75
    s_nop 0
    v_mul_f32 v78, v72, v76
    v_mul_f32 v79, v74, v77
    s_mov_b32 exec_lo, 0
    s_mov_b32 exec_hi, 0x80000000
    s_movk_i32 s70, 0x2000
    buffer_store_dwordx2 v[76:77], v118, s[48:51], 0 offen
    buffer_store_dwordx2 v[78:79], v118, s[48:51], s70 offen
    s_endpgm
    """)
    A("""
k1_mod:
    s_sub_u32 s56, s2, 256
    v_and_b32 v1, 7, v0                    ; cg
    v_lshrrev_b32 v2, 3, v0                ; rr
    s_movk_i32 s60, 6144
    v_mul_lo_u32 v4, v2, s60
    s_lshl_b32 s61, s56, 7
    v_lshl_add_u32 v4, v1, 4, v4
    v_add_u32 v4, s61, v4
    v_lshlrev_b32 v5, 1, v0                ; c offset t*2
    s_waitcnt lgkmcnt(0)
    """)
    A.srd_from(24, 16, SIZE['c']); A.srd_from(28, 18, SIZE['wmod']); A.srd_from(32, 20, 3072*4, WS_MOD)
    A("buffer_load_ushort v6, v5, s[24:27], 0 offen")
    A("buffer_load_ushort v7, v5, s[24:27], 0 offen offset:512")
    for i in range(16):
        if i == 0: A(f"buffer_load_dwordx4 v[64:67], v4, s[28:31], 0 offen")
        else:
            A(f"s_mov_b32 s62, {i*196608}")
            A(f"buffer_load_dwordx4 v[{64+4*i}:{67+4*i}], v4, s[28:31], s62 offen")
    A("s_waitcnt vmcnt(16)")
    for r in ("v6","v7"):
        A(f"""
        v_lshlrev_b32 {r}, 16, {r}
        v_mul_f32 v8, 0xbfb8aa3b, {r}
        v_exp_f32 v8, v8
        v_add_f32 v8, 1.0, v8
        v_rcp_f32 v8, v8
        v_mul_f32 {r}, {r}, v8
        v_cvt_pk_bf16_f32 {r}, {r}, {r}
        v_lshlrev_b32 {r}, 16, {r}
        """)
    A("""
    v_and_b32 v8, 31, v0
    v_lshrrev_b32 v9, 5, v0
    v_lshl_add_u32 v8, v8, 4, v9
    v_lshlrev_b32 v8, 2, v8
    ds_write_b32 v8, v6
    ds_write_b32 v8, v7 offset:32
    s_waitcnt lgkmcnt(0)
    s_barrier
    v_lshlrev_b32 v5, 6, v2                ; rr*16*4
    ds_read_b128 v[24:27], v5
    ds_read_b128 v[28:31], v5 offset:16
    ds_read_b128 v[32:35], v5 offset:32
    ds_read_b128 v[36:39], v5 offset:48
    """)
    for e in range(8): A(f"v_mov_b32 v{40+e}, 0")
    A("s_waitcnt lgkmcnt(0)")
    for i in range(16):
        A(f"s_waitcnt vmcnt({15-i})")
        for d in range(4):
            A(f"v_lshlrev_b32 v{48+2*d}, 16, v{64+4*i+d}\nv_and_b32 v{49+2*d}, 0xffff0000, v{64+4*i+d}")
        sreg = 24 + i
        base = sreg & ~1
        sel = "op_sel:[0,0,0] op_sel_hi:[1,0,1]" if (sreg & 1) == 0 else "op_sel:[0,1,0] op_sel_hi:[1,1,1]"
        for d in range(4):
            A(f"v_pk_fma_f32 v[{40+2*d}:{41+2*d}], v[{48+2*d}:{49+2*d}], v[{base}:{base+1}], v[{40+2*d}:{41+2*d}] {sel}")
    for e in range(8): A(f"v_add_f32_dpp v{40+e}, v{40+e}, v{40+e} row_ror:8 row_mask:0xf bank_mask:0xf")
    for e in range(8): A(f"v_mov_b32 v{48+e}, v{40+e}")
    for e in range(8): A(f"v_permlane16_swap_b32 v{40+e}, v{48+e}")
    for e in range(8): A(f"v_add_f32 v{40+e}, v{40+e}, v{48+e}")
    for e in range(8): A(f"v_mov_b32 v{48+e}, v{40+e}")
    for e in range(8): A(f"v_permlane32_swap_b32 v{40+e}, v{48+e}")
    for e in range(8): A(f"v_add_f32 v{40+e}, v{40+e}, v{48+e}")
    A("""
    v_lshrrev_b32 v5, 6, v0
    v_lshlrev_b32 v5, 8, v5
    v_lshl_add_u32 v5, v1, 5, v5
    v_and_b32 v8, 63, v0
    v_cmp_gt_u32 vcc, 8, v8
    s_and_saveexec_b64 s[64:65], vcc
    ds_write_b128 v5, v[40:43] offset:2048
    ds_write_b128 v5, v[44:47] offset:2064
    s_mov_b64 exec, s[64:65]
    s_waitcnt lgkmcnt(0)
    s_barrier
    v_lshlrev_b32 v5, 2, v0
    v_cmp_gt_u32 vcc, 64, v0
    s_and_saveexec_b64 s[64:65], vcc
    s_cbranch_execz k1_done
    ds_read_b32 v8, v5 offset:2048
    ds_read_b32 v9, v5 offset:2304
    ds_read_b32 v10, v5 offset:2560
    ds_read_b32 v11, v5 offset:2816
    s_lshl_b32 s61, s56, 8
    s_lshr_b32 s59, s56, 3
    s_waitcnt lgkmcnt(0)
    v_add_f32 v8, v8, v9
    v_add_f32 v10, v10, v11
    v_add_f32 v8, v8, v10
    v_cvt_pk_bf16_f32 v8, v8, v8
    v_lshlrev_b32 v8, 16, v8
    s_cmp_eq_u32 s59, 1
    s_cselect_b32 s62, 1, 0
    s_cmp_eq_u32 s59, 4
    s_cselect_b32 s62, 1, s62
    s_cmp_eq_u32 s62, 0
    s_cbranch_scc1 k1_noadd
    v_add_f32 v8, 1.0, v8
    v_cvt_pk_bf16_f32 v8, v8, v8
    v_lshlrev_b32 v8, 16, v8
k1_noadd:
    buffer_store_dword v8, v5, s[32:35], s61 offen
k1_done:
    s_endpgm
    """)
    A.end_kernel(k, vgpr=128, sgpr=80)
    A.launch(k, (304,1,1), (256,1,1), lds=3072)

H_COPY = 4160; H_CH = 4*H_COPY
U_BASE = 2*H_CH
U_CH = 4608
X_BASE = U_BASE + 2*U_CH
K2_LDS = X_BASE + 4*4096

def k2(A, side=None):
    k = "k2_conv_kernel"; A.begin_kernel(k)
    A("""
    s_cmp_ge_u32 s2, 256
    s_cbranch_scc1 k2_done
    s_load_dwordx4 s[4:7], s[0:1], 32
    s_load_dwordx2 s[8:9], s[0:1], 104     ; ws
    v_lshrrev_b32 v1, 6, v0
    v_and_b32 v2, 63, v0                   ; lane
    v_readfirstlane_b32 s10, v1            ; wave
    s_lshr_b32 s11, s10, 1                 ; c
    s_and_b32 s12, s10, 1                  ; pi
    s_lshl_b32 s13, s2, 1
    s_add_u32 s13, s13, s11                ; ch
    s_lshl_b32 s14, s13, 12                ; ch*4096
    v_and_b32 v3, 15, v2                   ; n (or i)
    v_lshrrev_b32 v4, 4, v2                ; g
    s_waitcnt lgkmcnt(0)
    """)
    A("""
    s_add_u32 s16, s4, s14
    s_addc_u32 s17, s5, 0
    s_mov_b32 s18, 4096
    s_mov_b32 s19, 0x20000
    s_add_u32 s20, s8, s14
    s_addc_u32 s21, s9, 0
    s_mov_b32 s22, 4096
    s_mov_b32 s23, 0x20000
    """)
    A("""
    s_lshl_b32 s15, s12, 11                ; pi*128*16
    v_lshlrev_b32 v5, 4, v2
    v_add_u32 v5, s15, v5                  ; 16 a  (i=0)
    v_subrev_u32 v6, 8, v5                 ; 16 a - 8
    buffer_load_dwordx2 v[8:9], v6, s[16:19], 0 offen
    buffer_load_dwordx4 v[10:13], v5, s[16:19], 0 offen
    buffer_load_dwordx2 v[14:15], v6, s[16:19], 0 offen offset:1024
    buffer_load_dwordx4 v[16:19], v5, s[16:19], 0 offen offset:1024
    ; u DMA: this wave loads bytes [pi*2048, +2048) of the row -> LDS U_c + 512 + pi*2048
    s_mul_i32 s36, s11, %d
    s_add_u32 s36, s36, %d
    s_lshl_b32 s37, s12, 11
    s_add_u32 s38, s36, s37
    s_add_u32 s38, s38, 512
    v_lshlrev_b32 v7, 4, v2
    v_add_u32 v7, s37, v7
    s_mov_b32 m0, s38
    s_nop 0
    buffer_load_dwordx4 v7, s[20:23], 0 offen lds
    s_add_u32 s38, s38, 1024
    s_mov_b32 m0, s38
    s_nop 0
    v_add_u32 v20, 1024, v7
    buffer_load_dwordx4 v20, s[20:23], 0 offen lds
    """ % (U_CH, U_BASE))
    A(f"""
    s_add_u32 s24, s8, {WS_QT}
    s_addc_u32 s25, s9, 0
    s_add_u32 s24, s24, s14
    s_addc_u32 s25, s25, 0
    s_mov_b32 s26, 4096
    s_mov_b32 s27, 0x20000
    s_add_u32 s28, s8, {WS_X1T}
    s_addc_u32 s29, s9, 0
    s_add_u32 s28, s28, s14
    s_addc_u32 s29, s29, 0
    s_mov_b32 s30, 4096
    s_mov_b32 s31, 0x20000
    s_add_u32 s32, s8, {WS_R1}
    s_addc_u32 s33, s9, 0
    s_mov_b32 s34, 0x4000
    s_mov_b32 s35, 0x20000
    v_lshlrev_b32 v192, 4, v3
    v_lshl_add_u32 v192, v4, 2, v192         ; vS = 16n + 4g
    s_lshl_b32 s39, s12, 10
    v_add_u32 v192, s39, v192
    v_lshlrev_b32 v193, 1, v192              ; *2 bytes  (q, x1, u)
    v_lshlrev_b32 v194, 2, v192
    s_movk_i32 s40, 0x2000
    """)
    QR = 200; SR = 208
    for tt in range(4):
        A(f"buffer_load_dwordx2 v[{QR+2*tt}:{QR+2*tt+1}], v193, s[24:27], 0 offen offset:{512*tt}")
    for tt in range(4):
        A(f"buffer_load_dwordx4 v[{SR+4*tt}:{SR+4*tt+3}], v194, s[32:35], 0 offen offset:{1024*tt}")
        A(f"buffer_load_dwordx4 v[{SR+16+4*tt}:{SR+16+4*tt+3}], v194, s[32:35], s40 offen offset:{1024*tt}")
    A(f"""
    s_lshl_b32 s41, s13, 2
    s_add_u32 s42, s8, {WS_MOD}
    s_addc_u32 s43, s9, 0
    s_add_u32 s42, s42, s41
    s_addc_u32 s43, s43, 0
    s_load_dword s44, s[42:43], 0
    s_load_dword s45, s[42:43], 2048
    s_load_dword s46, s[42:43], 4096
    s_lshl_b32 s41, s2, 2
    s_add_u32 s6, s6, s41
    s_addc_u32 s7, s7, 0
    s_load_dword s56, s[6:7], 0
    """)
    A(f"""
    v_mov_b32 v24, 0
    v_mov_b32 v25, 0
    v_mov_b32 v26, 0
    v_mov_b32 v27, 0
    s_mul_i32 s57, s11, {H_CH}             ; H_c
    v_lshlrev_b32 v28, 4, v2
    v_add_u32 v28, s36, v28
    v_subrev_u32 v29, 32, v2
    v_lshrrev_b32 v30, 1, v29
    v_mul_u32_u24 v30, {H_COPY}, v30
    v_and_b32 v29, 1, v2
    v_lshl_add_u32 v30, v29, 4, v30
    v_add_u32 v30, s57, v30
    v_cmp_gt_u32 vcc, 32, v2
    v_cndmask_b32 v28, v30, v28, vcc
    v_cmp_gt_u32 vcc, 40, v2
    s_cmp_eq_u32 s12, 0
    s_cselect_b64 s[58:59], vcc, 0
    s_mov_b64 exec, s[58:59]
    s_cbranch_execz k2_nozero
    ds_write_b128 v28, v[24:27]
k2_nozero:
    s_mov_b64 exec, -1
    """)
    A("s_waitcnt vmcnt(14)")
    A(f"""
    ; W address: H_c + 16 a + 32
    v_add_u32 v31, s57, v5
    v_cmp_eq_u32 vcc, 0, v5
    v_cndmask_b32 v8, v8, v24, vcc
    v_cndmask_b32 v9, v9, v24, vcc
    """)
    for i,(b) in enumerate((8, 14)):
        d2,d3,d4,d5,d6,d7 = [f"v{b+j}" for j in range(6)]
        off = 32 + 1024*i
        A(f"ds_write_b128 v31, v[{b+2}:{b+5}] offset:{off + 3*H_COPY}")
        A(f"v_mov_b32 v32, {d3}\nv_mov_b32 v33, {d4}\nv_mov_b32 v34, {d5}\nv_mov_b32 v35, {d6}")
        A(f"ds_write_b128 v31, v[32:35] offset:{off + 1*H_COPY}")
        A(f"v_alignbit_b32 v36, {d3}, {d2}, 16\nv_alignbit_b32 v37, {d4}, {d3}, 16\nv_alignbit_b32 v38, {d5}, {d4}, 16\nv_alignbit_b32 v39, {d6}, {d5}, 16")
        A(f"ds_write_b128 v31, v[36:39] offset:{off + 0*H_COPY}")
        A(f"v_alignbit_b32 v40, {d4}, {d3}, 16\nv_alignbit_b32 v41, {d5}, {d4}, 16\nv_alignbit_b32 v42, {d6}, {d5}, 16\nv_alignbit_b32 v43, {d7}, {d6}, 16")
        A(f"ds_write_b128 v31, v[40:43] offset:{off + 2*H_COPY}")
    A(f"""
    s_lshl_b32 s60, s12, 6
    s_sub_u32 s61, s36, s60
    s_add_u32 s61, s61, 96
    v_lshlrev_b32 v44, 5, v3
    v_lshl_add_u32 v44, v4, 4, v44
    v_add_u32 v44, s61, v44
    s_add_u32 s62, s57, s60
    s_add_u32 s62, s62, 56
    v_and_b32 v45, 3, v3
    v_mul_u32_u24 v45, {H_COPY}, v45
    v_lshrrev_b32 v46, 2, v3
    v_lshl_add_u32 v45, v46, 3, v45
    v_lshlrev_b32 v46, 4, v4
    v_sub_u32 v45, v45, v46
    v_add_u32 v45, s62, v45
    s_waitcnt vmcnt(12) lgkmcnt(0)
    s_barrier
    """)
    BR = 64
    ACC = 32+16
    ACC = 8
    AB = 48
    for s in range(32):
        A(f"ds_read_b128 v[{BR+4*s}:{BR+4*s+3}], v44 offset:{128*s}")
        if s == 14 or s==29: A("s_waitcnt lgkmcnt(4)")
    order = []
    for i in range(16): order += [31 - i, i]
    def rdA(idx):
        mu = order[idx]; b = AB + 4*(idx % 4)
        A(f"ds_read_b64 v[{b}:{b+1}], v45 offset:{128*mu+8}")
        A(f"ds_read_b64 v[{b+2}:{b+3}], v45 offset:{128*mu}")
    rdA(0); rdA(1)
    touched = set()
    for idx in range(32):
        if idx + 2 < 32:
            rdA(idx + 2)
            A("s_waitcnt lgkmcnt(4)")
        elif idx + 1 < 32: A("s_waitcnt lgkmcnt(2)")
        else: A("s_waitcnt lgkmcnt(0)")
        mu = order[idx]; b = AB + 4*(idx % 4)
        for t in range(mu // 4, 8):
            sl = 4*t - mu + 3
            acc = f"v[{ACC+4*t}:{ACC+4*t+3}]"
            c = acc if t in touched else "0"
            touched.add(t)
            A(f"v_mfma_f32_16x16x32_bf16 {acc}, v[{b}:{b+3}], v[{BR+4*sl}:{BR+4*sl+3}], {c}")
    A("""
    s_cmp_eq_u32 s12, 0
    s_cbranch_scc1 k2_noswap
    """)
    for i in range(16): A(f"v_swap_b32 v{ACC+i}, v{ACC+16+i}")
    A(f"""
k2_noswap:
    s_lshl_b32 s63, s10, 12
    s_add_u32 s63, s63, {X_BASE}
    v_lshlrev_b32 v46, 4, v2
    v_add_u32 v47, s63, v46
    s_xor_b32 s63, s10, 1
    s_lshl_b32 s63, s63, 12
    s_add_u32 s63, s63, {X_BASE}
    v_add_u32 v46, s63, v46
    """)
    for tt in range(4):
        A(f"ds_write_b128 v47, v[{ACC+16+4*tt}:{ACC+16+4*tt+3}] offset:{1024*tt}")
    A(f"s_add_u32 s64, s36, 512\nv_add_u32 v48, s64, v193")
    for tt in range(4):
        A(f"ds_read_b64 v[{50+2*tt}:{51+2*tt}], v48 offset:{512*tt}")
    A("""
    s_waitcnt lgkmcnt(0)
    s_barrier
    """)
    for tt in range(4):
        A(f"ds_read_b128 v[{64+4*tt}:{64+4*tt+3}], v46 offset:{1024*tt}")
    A("v_mov_b32 v80, s44\nv_mov_b32 v81, s45\nv_mov_b32 v82, s46")
    A("""
    s_lshl_b32 s65, s11, 4
    s_lshr_b32 s56, s56, s65
    s_lshl_b32 s56, s56, 16               ; D as f32
    s_waitcnt vmcnt(0) lgkmcnt(0)
    """)
    for tt in range(4):
        for r in range(4):
            y = f"v{ACC+4*tt+r}"
            A(f"v_add_f32 {y}, {y}, v{64+4*tt+r}")
        qd = [QR+2*tt, QR+2*tt+1]; ud = [50+2*tt, 51+2*tt]
        for r in range(4):
            y = f"v{ACC+4*tt+r}"
            qreg = f"v{qd[r>>1]}"; ureg = f"v{ud[(3-r)>>1]}"
            if r & 1: A(f"v_and_b32 v84, 0xffff0000, {qreg}")
            else: A(f"v_lshlrev_b32 v84, 16, {qreg}")
            if (3-r) & 1: A(f"v_and_b32 v85, 0xffff0000, {ureg}")
            else: A(f"v_lshlrev_b32 v85, 16, {ureg}")
            A(f"v_fma_f32 {y}, v85, s56, {y}")
            A(f"v_fma_f32 v86, v84, v{SR+4*tt+r}, -v{SR+16+4*tt+r}")
            A(f"v_fma_f32 v86, v86, v81, v80")
            A(f"v_mul_f32 v86, v86, {y}")
            A(f"v_fma_f32 {y}, v86, v82, v84")
        A(f"v_cvt_pk_bf16_f32 v{88+2*tt}, v{ACC+4*tt}, v{ACC+4*tt+1}")
        A(f"v_cvt_pk_bf16_f32 v{89+2*tt}, v{ACC+4*tt+2}, v{ACC+4*tt+3}")
        A(f"buffer_store_dwordx2 v[{88+2*tt}:{89+2*tt}], v193, s[28:31], 0 offen offset:{512*tt}")
    A("""
k2_done:
    s_endpgm
    """)
    A.end_kernel(k, vgpr=240, sgpr=80)
    A.launch(k, (256,1,1), (256,1,1), lds=K2_LDS)


def ks(A):
    k = "ks_side_kernel"; A.begin_kernel(k)
    A(f"""
    s_cmp_ge_u32 s2, 224
    s_cbranch_scc1 ks_done
    s_load_dwordx4 s[4:7], s[0:1], 56      ; w1, w2
    s_load_dwordx2 s[8:9], s[0:1], 104     ; ws
    v_lshrrev_b32 v1, 6, v0
    v_and_b32 v2, 63, v0                   ; fp
    v_readfirstlane_b32 s10, v1            ; dg
    s_and_b32 s11, s2, 15                  ; db
    s_lshr_b32 s12, s2, 4                  ; fb
    s_lshl_b32 s13, s11, 5
    s_lshl_b32 s14, s10, 3
    s_add_u32 s13, s13, s14                ; d0
    s_waitcnt lgkmcnt(0)
    """)
    A.srd_from(16, 4, SIZE['w1']); A.srd_from(20, 6, SIZE['w2'])
    A(f"""
    s_lshl_b32 s14, s13, 2
    s_add_u32 s24, s8, {WS_MOD + 3*2048}
    s_addc_u32 s25, s9, 0
    s_add_u32 s24, s24, s14
    s_addc_u32 s25, s25, 0
    s_load_dwordx8 s[32:39], s[24:25], 0       ; sb
    s_load_dwordx8 s[40:47], s[24:25], 2048    ; cb1
    s_lshl_b32 s14, s12, 8
    v_lshlrev_b32 v3, 2, v2
    v_add_u32 v3, s14, v3
    s_mul_i32 s14, s13, 3584
    """)
    for i in range(8):
        A(f"buffer_load_dword v{8+i}, v3, s[16:19], s14 offen")
        if i < 7: A("s_add_u32 s14, s14, 3584")
    A("""
    s_lshr_b32 s26, s2, 2                  ; F
    s_lshr_b32 s27, s2, 1
    s_and_b32 s27, s27, 1                  ; a
    s_and_b32 s28, s2, 1                   ; g
    s_lshl_b32 s29, s26, 5
    s_lshl_b32 s30, s27, 4
    s_add_u32 s29, s29, s30
    s_lshl_b32 s30, s28, 2
    s_add_u32 s29, s29, s30
    s_lshl_b32 s29, s29, 10
    v_lshlrev_b32 v4, 2, v0
    """)
    for j in range(8):
        A(f"s_add_u32 s30, s29, {(8*(j>>2) + (j&3))*1024}")
        A(f"buffer_load_dword v{16+j}, v4, s[20:23], s30 offen")
    A.srd_from(48, 8, SIZE['w1'], WS_W1F); A.srd_from(52, 8, SIZE['w2'], WS_W2F); A.srd_from(56, 8, 16*2*1792*4, WS_C12P)
    A("""
    s_mov_b32 s60, 0x05040100
    s_mov_b32 s61, 0x07060302
    s_mov_b32 s62, 0x3f803f80
    s_waitcnt vmcnt(8) lgkmcnt(0)
    """)
    for i in range(8):
        A(f"v_lshlrev_b32 v{24+i}, 16, v{8+i}\nv_and_b32 v{32+i}, 0xffff0000, v{8+i}")
    A("v_mul_f32 v42, s32, v24\nv_mul_f32 v43, s32, v32")
    for i in range(1, 8):
        A(f"v_fmac_f32 v42, s{32+i}, v{24+i}\nv_fmac_f32 v43, s{32+i}, v{32+i}")
    for i in range(8):
        A(f"v_mul_f32 v{24+i}, s{40+i}, v{24+i}\nv_mul_f32 v{32+i}, s{40+i}, v{32+i}")
    for d in range(4):
        A(f"v_cvt_pk_bf16_f32 v{44+d}, v{24+2*d}, v{25+2*d}")
        A(f"v_cvt_pk_bf16_f32 v{48+d}, v{32+2*d}, v{33+2*d}")
    A("v_mov_b32 v40, 0\nv_mov_b32 v41, 0")
    for d in range(4):
        A(f"v_dot2c_f32_bf16 v40, s62, v{44+d}\nv_dot2c_f32_bf16 v41, s62, v{48+d}")
    A("""
    s_lshl_b32 s14, s12, 17
    s_lshl_b32 s15, s11, 11
    s_add_u32 s14, s14, s15
    s_lshr_b32 s15, s10, 1
    s_lshl_b32 s15, s15, 10
    s_add_u32 s14, s14, s15
    s_and_b32 s15, s10, 1
    s_lshl_b32 s15, s15, 9
    s_add_u32 s14, s14, s15
    v_lshrrev_b32 v5, 4, v2
    v_lshlrev_b32 v5, 15, v5
    v_and_b32 v6, 15, v2
    v_lshl_add_u32 v5, v6, 5, v5
    buffer_store_dwordx4 v[44:47], v5, s[48:51], s14 offen
    buffer_store_dwordx4 v[48:51], v5, s[48:51], s14 offen offset:16
    v_lshlrev_b32 v6, 4, v2
    s_lshl_b32 s15, s10, 10
    v_add_u32 v6, s15, v6
    ds_write_b128 v6, v[40:43]
    s_waitcnt vmcnt(2)
    """)
    for e in range(2):
        sel = "s60" if e == 0 else "s61"
        for d in range(4):
            A(f"v_perm_b32 v{52+4*e+d}, v{16+2*d+1}, v{16+2*d}, {sel}")
    A("""
    v_lshrrev_b32 v5, 5, v0
    s_mov_b32 s15, 229376
    v_mul_lo_u32 v5, v5, s15
    v_lshrrev_b32 v6, 4, v0
    v_and_b32 v6, 1, v6
    v_lshl_add_u32 v5, v6, 10, v5
    v_and_b32 v6, 15, v0
    v_lshl_add_u32 v5, v6, 5, v5
    s_lshl_b32 s14, s26, 12
    s_lshl_b32 s15, s27, 11
    s_add_u32 s14, s14, s15
    s_lshl_b32 s15, s28, 9
    s_add_u32 s14, s14, s15
    buffer_store_dwordx4 v[52:55], v5, s[52:55], s14 offen
    buffer_store_dwordx4 v[56:59], v5, s[52:55], s14 offen offset:16
    s_waitcnt lgkmcnt(0)
    s_barrier
    v_and_b32 v6, 127, v0
    v_lshrrev_b32 v7, 7, v0
    v_lshrrev_b32 v5, 1, v6
    v_lshlrev_b32 v5, 4, v5
    v_lshl_add_u32 v5, v7, 3, v5
    v_and_b32 v8, 1, v0
    v_lshl_add_u32 v5, v8, 2, v5
    ds_read_b32 v8, v5
    ds_read_b32 v9, v5 offset:1024
    ds_read_b32 v10, v5 offset:2048
    ds_read_b32 v11, v5 offset:3072
    v_mul_u32_u24 v7, 7168, v7
    v_lshl_add_u32 v7, v6, 2, v7
    s_mul_i32 s14, s11, 14336
    s_lshl_b32 s15, s12, 9
    s_add_u32 s14, s14, s15
    s_waitcnt lgkmcnt(0)
    v_add_f32 v8, v8, v9
    v_add_f32 v10, v10, v11
    v_add_f32 v8, v8, v10
    buffer_store_dword v8, v7, s[56:59], s14 offen
ks_done:
    s_endpgm
    """)
    A.end_kernel(k, vgpr=64, sgpr=80)
    A.launch(k, (224,1,1), (256,1,1), lds=4096)

K3_C = 131072; K3_ST = K3_C + 1024; K3_LDS = K3_ST + 1024
def k3(A):
    k = "k3_gemm1_kernel"; A.begin_kernel(k)
    A(f"""
    s_cmp_ge_u32 s2, 224
    s_cbranch_scc1 k3_done
    s_load_dwordx2 s[8:9], s[0:1], 104     ; ws
    v_lshrrev_b32 v1, 6, v0
    v_and_b32 v2, 63, v0                   ; lane
    v_readfirstlane_b32 s10, v1            ; wave
    s_and_b32 s11, s2, 7                   ; x
    s_lshr_b32 s12, s2, 3                  ; j
    s_lshr_b32 s13, s11, 1
    s_lshl_b32 s13, s13, 2
    s_and_b32 s14, s12, 3
    s_add_u32 s13, s13, s14                ; rbk
    s_and_b32 s14, s11, 1
    s_mul_i32 s14, s14, 7
    s_lshr_b32 s15, s12, 2
    s_add_u32 s14, s14, s15                ; fb
    s_lshl_b32 s15, s14, 2
    s_add_u32 s15, s15, s10                ; F
    s_waitcnt lgkmcnt(0)
    """)
    A.srd_from(16, 8, 2048*512*2, WS_X1T)
    A(f"""
    s_lshl_b32 s3, s15, 15
    s_add_u32 s20, s8, {WS_W1F}
    s_addc_u32 s21, s9, 0
    s_add_u32 s20, s20, s3
    s_addc_u32 s21, s21, 0
    s_mov_b32 s22, 32768
    s_mov_b32 s23, 0x20000
    """)
    A.srd_from(24, 8, 16*2*1792*4, WS_C12P); A.srd_from(28, 8, 2048*1792*2, WS_HID)
    A("""
    v_and_b32 v3, 127, v0
    v_lshrrev_b32 v4, 7, v0
    v_mul_u32_u24 v4, 7168, v4
    v_lshl_add_u32 v4, v3, 2, v4
    s_lshl_b32 s3, s14, 9
    v_add_u32 v4, s3, v4
    s_mov_b32 s3, 0
    """)
    for db in range(16):
        A(f"buffer_load_dword v{200+db}, v4, s[24:27], s3 offen")
        if db < 15: A("s_add_u32 s3, s3, 14336")
    A("""
    v_lshrrev_b32 v5, 4, v2                ; row
    v_and_b32 v6, 15, v2                   ; p
    v_lshlrev_b32 v7, 2, v5
    v_xor_b32 v6, v6, v7
    v_lshlrev_b32 v6, 4, v6
    v_lshl_add_u32 v6, v5, 12, v6
    s_lshl_b32 s3, s13, 8
    v_add_u32 v6, s3, v6
    v_lshlrev_b32 v7, 4, v2                ; lane*16
    s_lshl_b32 s32, s10, 16
    s_lshl_b32 s33, s10, 12
    """)
    WR = 64
    def issue(c):
        for i in range(4):
            A(f"s_add_u32 s34, s32, {(64*c+4*i)*4096}")
            A(f"s_add_u32 m0, s33, {(64*c+4*i)*256}")
            A("s_nop 0")
            A(f"buffer_load_dwordx4 v6, s[16:19], s34 offen lds")
        A(f"s_mov_b32 s34, {c*4096}")
        for i in range(4):
            kk = 4*c+i
            A(f"buffer_load_dwordx4 v[{WR+4*kk}:{WR+4*kk+3}], v7, s[20:23], s34 offen offset:{i*1024}")
    for c in range(5): issue(c)
    A("s_waitcnt vmcnt(40)")
    for i in range(8): A(f"v_add_f32 v{200+i}, v{200+i}, v{208+i}")
    for i in range(4): A(f"v_add_f32 v{200+i}, v{200+i}, v{204+i}")
    A("v_add_f32 v200, v200, v201\nv_add_f32 v202, v202, v203\nv_add_f32 v200, v200, v202")
    A(f"v_lshlrev_b32 v4, 2, v0\nds_write_b32 v4, v200 offset:0\n".replace("offset:0", f"offset:{0}") if False else "")
    A(f"v_lshlrev_b32 v4, 2, v0\nv_add_u32 v4, {K3_C}, v4\nds_write_b32 v4, v200")
    issue(5); issue(6)
    A("""
    v_lshrrev_b32 v12, 4, v2               ; G
    v_lshrrev_b32 v13, 2, v2
    v_and_b32 v13, 3, v13                  ; r
    v_and_b32 v14, 3, v2                   ; c4
    v_lshrrev_b32 v15, 1, v12              ; G>>1
    v_lshl_add_u32 v15, v15, 3, v13        ; 8(G>>1)+r
    v_lshlrev_b32 v15, 8, v15              ; *256
    v_and_b32 v16, 1, v12
    v_lshlrev_b32 v16, 1, v16
    v_lshrrev_b32 v17, 1, v14
    v_add_u32 v16, v16, v17                ; low2
    v_lshl_add_u32 v15, v16, 4, v15
    v_and_b32 v17, 1, v14
    v_lshl_add_u32 v15, v17, 3, v15
    """)
    for sl in range(4):
        A(f"s_add_u32 s35, s10, {sl}\ns_and_b32 s35, s35, 3\nv_xor_b32 v17, s35, v13\nv_lshl_add_u32 v{8+sl}, v17, 6, v15")
    ACC = 192
    BB = 16
    A("v_mov_b32 v48, 0\nv_mov_b32 v49, 0\ns_mov_b32 s36, 0x3f803f80")
    def rdB(kap):
        b = BB + 16*(kap & 1)
        off = 4096*(kap & 15)
        for sl in range(4):
            A(f"ds_read_b64_tr_b16 v[{b+4*sl}:{b+4*sl+1}], v{8+sl} offset:{off}")
            A(f"ds_read_b64_tr_b16 v[{b+4*sl+2}:{b+4*sl+3}], v{8+sl} offset:{off+1024}")
    def chunk_wait(c):
        if c == 0:
            A("s_waitcnt vmcnt(48) lgkmcnt(0)\ns_barrier"); issue(7)
        else:
            A(f"s_waitcnt vmcnt({8*(7-c)})\ns_barrier")
    chunk_wait(0)
    rdB(0)
    for kap in range(32):
        if kap + 1 < 32:
            if (kap + 1) % 4 == 0: chunk_wait((kap+1)//4)
            if kap + 1 == 16:
                for sl in range(4): A(f"v_add_u32 v{8+sl}, 0x10000, v{8+sl}")
            rdB(kap + 1)
            A("s_waitcnt lgkmcnt(8)")
        else:
            A("s_waitcnt lgkmcnt(0)")
        b = BB + 16*(kap & 1)
        for sl in range(4):
            acc = f"v[{ACC+16*sl}:{ACC+16*sl+15}]"
            c = acc if kap > 0 else "0"
            A(f"v_mfma_f32_32x32x16_bf16 {acc}, v[{WR+4*kap}:{WR+4*kap+3}], v[{b+4*sl}:{b+4*sl+3}], {c}")
            if sl in (0, 1):
                for d in (2*sl, 2*sl+1):
                    A(f"v_dot2c_f32_bf16 v48, s36, v{b+d}\nv_dot2c_f32_bf16 v49, v{b+d}, v{b+d}")
    A(f"""
    v_mov_b32 v50, v48
    v_mov_b32 v51, v49
    v_permlane32_swap_b32 v48, v50
    v_permlane32_swap_b32 v49, v51
    v_add_f32 v48, v48, v50
    v_add_f32 v49, v49, v51
    v_mul_f32 v48, 0x3b000000, v48
    v_mul_f32 v49, 0x3b000000, v49
    v_fma_f32 v49, -v48, v48, v49
    v_max_f32 v49, 0, v49
    v_add_f32 v49, 0x3727c5ac, v49
    v_rsq_f32 v50, v49
    s_nop 0
    v_mul_f32 v51, v48, v50
    v_and_b32 v52, 31, v2
    v_lshlrev_b32 v52, 3, v52
    s_lshl_b32 s37, s10, 8
    s_add_u32 s37, s37, {K3_ST}
    v_add_u32 v53, s37, v52
    ds_write_b64 v53, v[50:51]
    s_waitcnt lgkmcnt(0)
    s_barrier
    """)
    for sl in range(4):
        A(f"s_add_u32 s37, s10, {sl}\ns_and_b32 s37, s37, 3\ns_lshl_b32 s37, s37, 8\ns_add_u32 s37, s37, {K3_ST}\nv_add_u32 v53, s37, v52\nds_read_b64 v[{56+2*sl}:{57+2*sl}], v53")
    A(f"""
    v_lshrrev_b32 v54, 5, v2
    v_lshlrev_b32 v54, 4, v54
    s_lshl_b32 s37, s10, 7
    s_add_u32 s37, s37, {K3_C}
    v_add_u32 v54, s37, v54
    """)
    for q in range(4):
        A(f"ds_read_b128 v[{64+4*q}:{64+4*q+3}], v54 offset:{32*q}")
        A(f"ds_read_b128 v[{80+4*q}:{80+4*q+3}], v54 offset:{512+32*q}")
    A("s_waitcnt lgkmcnt(0)")
    for sl in range(4):
        st = 56 + 2*sl
        A(f"""
        s_add_u32 s37, s10, {sl}
        s_and_b32 s37, s37, 3
        s_lshl_b32 s38, s13, 2
        s_add_u32 s37, s37, s38
        s_mul_i32 s37, s37, 56
        s_add_u32 s37, s37, s15
        s_lshl_b32 s37, s37, 11
        """)
        ob = 96 + 8*(sl & 1)
        for p in range(8):
            a0 = ACC + 16*sl + 2*p
            A(f"v_pk_fma_f32 v[{a0}:{a0+1}], v[{a0}:{a0+1}], v[{st}:{st+1}], v[{80+2*p}:{81+2*p}] op_sel:[0,0,0] op_sel_hi:[1,0,1]")
            A(f"v_pk_fma_f32 v[{a0}:{a0+1}], v[{64+2*p}:{65+2*p}], v[{st}:{st+1}], v[{a0}:{a0+1}] op_sel:[0,1,0] op_sel_hi:[1,1,1] neg_lo:[0,1,0] neg_hi:[0,1,0]")
            A(f"v_cvt_pk_bf16_f32 v{ob+p}, v{a0}, v{a0+1}")
            A(f"v_pk_max_i16 v{ob+p}, v{ob+p}, 0")
        A(f"buffer_store_dwordx4 v[{ob}:{ob+3}], v7, s[28:31], s37 offen")
        A(f"buffer_store_dwordx4 v[{ob+4}:{ob+7}], v7, s[28:31], s37 offen offset:1024")
    A("""
k3_done:
    s_endpgm
    """)
    A.end_kernel(k, vgpr=256, sgpr=80)
    A.launch(k, (224,1,1), (256,1,1), lds=K3_LDS)

K4_P = 8192; K4_PW = 17408; K4_LDS = K4_P + 4*K4_PW
def k4(A):
    k = "k4_gemm2_kernel"; A.begin_kernel(k)
    A(f"""
    s_cmp_ge_u32 s2, 256
    s_cbranch_scc1 k4_done
    s_load_dwordx2 s[8:9], s[0:1], 104     ; ws
    s_load_dwordx2 s[4:5], s[0:1], 88      ; out
    v_lshrrev_b32 v1, 6, v0
    v_and_b32 v2, 63, v0                   ; lane
    v_readfirstlane_b32 s10, v1            ; wave
    s_and_b32 s11, s2, 7                   ; x
    s_lshr_b32 s12, s2, 3                  ; j
    s_lshl_b32 s13, s11, 2
    s_and_b32 s14, s12, 3
    s_add_u32 s13, s13, s14                ; rb64
    s_lshr_b32 s14, s12, 2                 ; cbk
    s_waitcnt lgkmcnt(0)
    s_mul_i32 s3, s13, {2*114688}
    s_mul_i32 s15, s10, {14*2048}
    s_add_u32 s3, s3, s15
    s_add_u32 s16, s8, {WS_HID}
    s_addc_u32 s17, s9, 0
    s_add_u32 s16, s16, s3
    s_addc_u32 s17, s17, 0
    s_mov_b32 s18, {114688 + 14*2048}
    s_mov_b32 s19, 0x20000
    ; W2F SRD
    s_mul_i32 s3, s14, 229376
    s_mul_i32 s15, s10, {14*4096}
    s_add_u32 s3, s3, s15
    s_add_u32 s20, s8, {WS_W2F}
    s_addc_u32 s21, s9, 0
    s_add_u32 s20, s20, s3
    s_addc_u32 s21, s21, 0
    s_mov_b32 s22, {14*4096}
    s_mov_b32 s23, 0x20000
    """)
    A.srd_from(24, 8, 2048*512*2, WS_X1T); A.srd_from(28, 4, SIZE['out']); A.srd_from(32, 8, 3072*4, WS_MOD)
    A("""
    v_lshrrev_b32 v3, 3, v2
    v_and_b32 v4, 7, v2
    v_lshlrev_b32 v3, 12, v3
    v_lshl_add_u32 v3, v4, 4, v3
    s_lshl_b32 s3, s13, 7
    v_add_u32 v3, s3, v3
    s_lshl_b32 s3, s14, 6
    s_lshl_b32 s15, s10, 4
    s_add_u32 s3, s3, s15
    s_lshl_b32 s3, s3, 12
    s_lshl_b32 s15, s10, 11                ; LDS: 16 w * 128
    s_mov_b32 m0, s15
    s_nop 0
    buffer_load_dwordx4 v3, s[24:27], s3 offen lds
    s_add_u32 s3, s3, 32768
    s_add_u32 m0, s15, 1024
    s_nop 0
    buffer_load_dwordx4 v3, s[24:27], s3 offen lds
    v_lshlrev_b32 v7, 4, v2                ; lane*16
    """)
    RING = 10; RB = 16
    ACC = 176
    def issue(kk):
        b = RB + 16*(kk % RING)
        A(f"s_mov_b32 s36, {(kk>>2)*4096}")
        A(f"buffer_load_dwordx4 v[{b}:{b+3}], v7, s[16:19], s36 offen offset:{(kk&3)*1024}")
        A(f"s_mov_b32 s37, {114688 + (kk>>2)*4096}")
        A(f"buffer_load_dwordx4 v[{b+4}:{b+7}], v7, s[16:19], s37 offen offset:{(kk&3)*1024}")
        A(f"s_mov_b32 s38, {(kk>>1)*4096}")
        A(f"buffer_load_dwordx4 v[{b+8}:{b+11}], v7, s[20:23], s38 offen offset:{((kk&1)*2)*1024}")
        A(f"buffer_load_dwordx4 v[{b+12}:{b+15}], v7, s[20:23], s38 offen offset:{((kk&1)*2+1)*1024}")
    for kk in range(RING): issue(kk)
    for kk in range(28):
        rem = min(28, kk + RING) - kk - 1
        A(f"s_waitcnt vmcnt({4*rem})")
        b = RB + 16*(kk % RING)
        for Nl in range(2):
            for Sl in range(2):
                acc = f"v[{ACC+16*(2*Nl+Sl)}:{ACC+16*(2*Nl+Sl)+15}]"
                c = acc if kk > 0 else "0"
                A(f"v_mfma_f32_32x32x16_bf16 {acc}, v[{b+8+4*Nl}:{b+11+4*Nl}], v[{b+4*Sl}:{b+4*Sl+3}], {c}")
        if kk + RING < 28: issue(kk + RING)
    A(f"""
    v_lshrrev_b32 v8, 4, v2                ; G
    v_lshlrev_b32 v9, 6, v8                ; G*64 bytes
    s_lshl_b32 s3, s14, 8
    s_add_u32 s3, s3, {5*2048}
    """)
    for i in range(4): A(f"buffer_load_dwordx4 v[{16+4*i}:{19+4*i}], v9, s[32:35], s3 offen offset:{16*i}")
    A(f"""
    v_and_b32 v10, 31, v2
    v_mul_u32_u24 v10, 272, v10
    v_lshrrev_b32 v11, 5, v2
    v_lshl_add_u32 v10, v11, 4, v10
    s_mul_i32 s3, s10, {K4_PW}
    s_add_u32 s3, s3, {K4_P}
    v_add_u32 v10, s3, v10
    """)
    for Nl in range(2):
        for Sl in range(2):
            for q in range(4):
                a0 = ACC + 16*(2*Nl+Sl) + 4*q
                A(f"ds_write_b128 v10, v[{a0}:{a0+3}] offset:{Sl*32*272 + Nl*128 + q*32}")
    A("""
    v_lshrrev_b32 v12, 2, v2
    v_and_b32 v12, 3, v12                  ; r
    v_lshl_add_u32 v12, v8, 4, v12         ; 16G + r
    v_lshlrev_b32 v12, 7, v12
    v_and_b32 v13, 3, v2
    v_lshl_add_u32 v12, v13, 3, v12
    s_lshl_b32 s3, s10, 5
    v_add_u32 v12, s3, v12
    s_waitcnt lgkmcnt(0)
    s_barrier
    """)
    for i in range(4): A(f"ds_read_b64_tr_b16 v[{32+2*i}:{33+2*i}], v12 offset:{512*i}")
    A(f"""
    v_and_b32 v13, 15, v2
    s_lshl_b32 s3, s10, 4
    v_add_u32 v13, s3, v13                 ; s
    v_mul_u32_u24 v14, 272, v13
    v_add_u32 v14, v14, v9
    """)
    for w in range(4):
        for i in range(4):
            A(f"ds_read_b128 v[{48+16*w+4*i}:{48+16*w+4*i+3}], v14 offset:{K4_P + w*K4_PW + 16*i}")
    A("""
    s_lshl_b32 s3, s13, 6
    v_add_u32 v13, s3, v13
    v_lshlrev_b32 v13, 10, v13
    v_lshl_add_u32 v13, v8, 5, v13
    s_lshl_b32 s3, s14, 7
    s_waitcnt vmcnt(0) lgkmcnt(0)
    """)
    for e in range(16):
        A(f"v_add_f32 v{48+e}, v{48+e}, v{64+e}\nv_add_f32 v{80+e}, v{80+e}, v{96+e}")
    for e in range(16):
        A(f"v_add_f32 v{48+e}, v{48+e}, v{80+e}")
    for e in range(16):
        x = 32 + (e >> 1)
        if e & 1: A(f"v_and_b32 v44, 0xffff0000, v{x}")
        else: A(f"v_lshlrev_b32 v44, 16, v{x}")
        A(f"v_fma_f32 v{48+e}, v{48+e}, v{16+e}, v44")
    for d in range(8): A(f"v_cvt_pk_bf16_f32 v{64+d}, v{48+2*d}, v{49+2*d}")
    A("""
    buffer_store_dwordx4 v[64:67], v13, s[28:31], s3 offen
    buffer_store_dwordx4 v[68:71], v13, s[28:31], s3 offen offset:16
k4_done:
    s_endpgm
    """)
    A.end_kernel(k, vgpr=240, sgpr=80)
    A.launch(k, (256,1,1), (256,1,1), lds=K4_LDS)

if __name__ == "__main__":
    A = Asm()
    which = sys.argv[2].split(",") if len(sys.argv) > 2 else ["k1"]
    for w in which: globals()[w](A)
    open(sys.argv[1], "w").write(A.text())
```

```python
import re
KN = "adaLN_cond__ssm_conv_h3__dense_activation_relu__prompt"

HEADER = """; Kernarg layout for this problem (112 bytes, ptrs only, base s[0:1]):
"""
ARG = dict(q=0, k=8, v=16, shift=24, ssmk=32, ssmD=40, bx=48, w1=56, w2=64, c=72, wmod=80, out=88, dbg=96, ws=104)
SIZE = dict(q=2048*512*2, k=2048*512*2, v=2048*512*2, shift=512*4*2, ssmk=512*2048*2, ssmD=512*2, w1=512*1792*2,
            w2=1792*512*2, c=512*2, wmod=512*3072*2, out=2048*512*2, dbg=256, ws=268435456)

TRANS = ("v_exp_f32","v_log_f32","v_rcp_f32","v_rsq_f32","v_sqrt_f32","v_sin_f32","v_cos_f32","v_rcp_iflag_f32",
         "v_exp_f16","v_log_f16","v_rcp_f16","v_rsq_f16","v_sqrt_f16")

def regs_of(op):
    op = op.strip()
    neg = op.lstrip("-")
    if neg.startswith("abs(") or neg.startswith("|"): neg = neg.strip("abs()|")
    op = neg
    m = re.fullmatch(r"([vsa])(\d+)", op)
    if m: return {(m.group(1), int(m.group(2)))}
    m = re.fullmatch(r"([vsa])\[(\d+):(\d+)\]", op)
    if m: return {(m.group(1), i) for i in range(int(m.group(2)), int(m.group(3)) + 1)}
    if op in ("vcc",): return {("s", 106), ("s", 107)}
    if op == "vcc_lo": return {("s", 106)}
    if op == "vcc_hi": return {("s", 107)}
    if op == "exec": return {("s", 126), ("s", 127)}
    if op == "m0": return {("s", 124)}
    return set()

class Ins:
    def __init__(self, text):
        self.text = text
        t = text.split(";")[0].strip()
        self.label = t.endswith(":")
        self.dir = t.startswith(".")
        if self.label or self.dir or not t:
            self.mn = None; return
        parts = t.split(None, 1)
        self.mn = parts[0]
        rest = parts[1] if len(parts) > 1 else ""
        ops = []; depth = 0; cur = ""
        for ch in rest:
            if ch == "[": depth += 1
            if ch == "]": depth -= 1
            if ch == "," and depth == 0: ops.append(cur.strip()); cur = ""
            else: cur += ch
        if cur.strip(): ops.append(cur.strip())
        mods = ""
        if ops:
            sp = ops[-1].split(None, 1)
            if len(sp) > 1: ops[-1] = sp[0]; mods = sp[1]
        self.ops = ops; self.mods = mods
        mn = self.mn
        self.is_mfma = mn.startswith("v_mfma") or mn.startswith("v_smfmac")
        self.is_valu = mn.startswith("v_") and not self.is_mfma
        self.is_salu = mn.startswith("s_")
        self.is_vmem = mn.startswith("buffer_") or mn.startswith("global_") or mn.startswith("flat_")
        self.is_ds = mn.startswith("ds_")
        self.is_trans = any(mn.startswith(x) for x in TRANS)
        self.is_dpp = bool(re.search(r"(row_shr|row_shl|row_ror|row_bcast|wave_sh|wave_ro|quad_perm|row_mirror|row_half_mirror|row_newbcast|row_share)", mods)) or mn.endswith("_dpp")
        self.is_permlane = mn.startswith("v_permlane")
        self.is_readlane = mn.startswith("v_readlane") or mn.startswith("v_readfirstlane") or mn.startswith("v_writelane")
        w = set(); r = set()
        R = [regs_of(o) for o in ops]
        if self.is_mfma:
            w = R[0]; self.srcA = R[1]; self.srcB = R[2]; self.srcC = R[3]; r = R[1] | R[2] | R[3]
            self.passes = 8 if "32x32" in mn else 4
            if "32x32x64" in mn or "16x16x128" in mn: self.passes *= 2
            if "4x4x4" in mn: self.passes = 2
            if "f32_32x32x2_f32" in mn: self.passes = 16
            if "f32_16x16x4_f32" in mn: self.passes = 8
        elif self.is_valu:
            if mn.startswith("v_cmpx"):
                w = R[0] | regs_of("exec"); r = set().union(*R[1:])
            elif mn.startswith("v_cmp"):
                w = R[0]; r = set().union(*R[1:])
            elif mn.startswith("v_permlane32_swap") or mn.startswith("v_permlane16_swap"):
                w = R[0] | R[1]; r = R[0] | R[1]
            elif re.match(r"v_(add|sub|subrev)_co_u32", mn):
                w = R[0] | R[1]; r = set().union(*R[2:])
            elif re.match(r"v_(addc|subb|subbrev)_co_u32", mn):
                w = R[0] | R[1]; r = set().union(*R[2:])
            elif mn.startswith("v_nop"):
                pass
            else:
                w = R[0]; r = set().union(*R[1:]) if len(R) > 1 else set()
                if mn.startswith("v_fmac") or mn.startswith("v_dot2c") or mn.startswith("v_mac") or mn.startswith("v_pk_fmac") or mn.startswith("v_writelane") or self.is_dpp or "sdwa" in mn or mn.startswith("v_cvt_sr") or mn.startswith("v_fmamk") :
                    r |= R[0]
                if mn.startswith("v_cndmask") and len(ops) == 3: r |= regs_of("vcc")
                if mn.startswith("v_div_fmas"): r |= regs_of("vcc")
        elif self.is_vmem:
            if "load" in mn and " lds" not in (" " + mods) and not mn.startswith("global_load_lds"):
                w = R[0]; r = set().union(*R[1:])
            elif "atomic" in mn and "sc0" in mods:
                w = R[0]; r = set().union(*R)
            else:
                r = set().union(*R) if R else set()
            if " lds" in (" " + mods) or mn.startswith("global_load_lds"): r |= regs_of("m0")
            self.wide_store = ("store" in mn) and (mn.endswith("x4") or mn.endswith("x3"))
            self.store_data = set()
            if "store" in mn:
                self.store_data = R[0] if mn.startswith("buffer_") else R[1]
        elif self.is_ds:
            if mn.startswith("ds_read") or mn.startswith("ds_bpermute") or mn.startswith("ds_permute") or mn.startswith("ds_swizzle") or "_rtn" in mn:
                w = R[0]; r = set().union(*R[1:])
            else:
                r = set().union(*R)
        elif self.is_salu:
            if mn.startswith("s_cmp") or mn.startswith("s_cbranch") or mn.startswith("s_branch") or mn in ("s_waitcnt","s_barrier","s_nop","s_endpgm","s_sleep","s_setprio") or mn.startswith("s_bitcmp"):
                r = set().union(*R) if R else set()
            else:
                w = R[0] if R else set(); r = set().union(*R[1:]) if len(R) > 1 else set()
                if "saveexec" in mn: w = w | regs_of("exec"); r |= regs_of("exec")
        self.w = w; self.r = r
    def states(self):
        if self.mn == "s_nop": return int(self.ops[0], 0) + 1
        return 1

def isv(S): return {x for x in S if x[0] in "va"}
def iss(S): return {x for x in S if x[0] == "s"}

def need(p, c):
    n = 0
    if p.is_valu:
        pv = isv(p.w); ps = iss(p.w)
        if pv:
            if c.is_valu and c.is_dpp and (pv & c.r): n = max(n, 2)
            if c.is_valu and c.is_readlane and (pv & c.r) and not c.mn.startswith("v_writelane"): n = max(n, 1)
            if c.is_valu and c.is_permlane and (pv & c.r): n = max(n, 2)
            if c.is_mfma and (pv & c.r): n = max(n, 2)
            if p.is_trans and c.is_valu and not c.is_trans and (pv & c.r): n = max(n, 1)
            if p.is_trans and (c.is_mfma or c.is_vmem or c.is_ds) and (pv & c.r): n = max(n, 1)
        if ps:
            if c.is_vmem and (ps & c.r): n = max(n, 5)
            if c.is_valu and (ps & c.r): n = max(n, 4 if c.is_readlane else 2)
            if c.is_salu and (ps & c.r): n = max(n, 4)
            if c.is_mfma and (ps & regs_of("exec")): n = max(n, 4)
            if (ps & regs_of("exec")) and c.is_valu and c.is_dpp: n = max(n, 5)
            if (ps & regs_of("exec")) and c.is_valu and (c.is_readlane or c.is_permlane): n = max(n, 4)
    if p.is_mfma:
        D = p.w
        big = {2: 5, 4: 8, 8: 12, 16: 20}[p.passes]
        if c.is_mfma:
            if D & (c.srcA | c.srcB): n = max(n, big)
            if D & c.srcC:
                if not (c.srcC == D and c.passes == p.passes): n = max(n, {2: 4, 4: 6, 8: 10, 16: 18}[p.passes])
                elif p.passes == 2: n = max(n, 2)
            elif D & c.w: n = max(n, {2: 4, 4: 6, 8: 10, 16: 18}[p.passes])
        elif c.is_valu or c.is_vmem or c.is_ds:
            if D & (c.r | c.w): n = max(n, big)
        if c.is_valu and (p.srcC & c.w): n = max(n, {2: 1, 4: 3, 8: 7, 16: 15}[p.passes])
    if p.is_vmem and getattr(p, "wide_store", False):
        if (c.is_valu or c.is_mfma) and (p.store_data & c.w): n = max(n, 2)
        elif (p.store_data & c.w): n = max(n, 1)
    if p.is_salu and (regs_of("m0") & p.w):
        if (c.is_vmem and (regs_of("m0") & c.r)): n = max(n, 1)
    return n

def pad_hazards(lines, window=24):
    out = []; hist = []
    npad = 0
    for text in lines:
        ins = Ins(text)
        if ins.mn is None:
            out.append(text); continue
        req = 0
        dist = 0
        for p in reversed(hist):
            k = need(p, ins)
            if k > dist: req = max(req, k - dist)
            dist += p.states()
            if dist > window: break
        while req > 0:
            k = min(req, 16)
            nop = Ins(f"s_nop {k-1}")
            out.append(f"    s_nop {k-1}"); hist.append(nop); req -= k; npad += 1
        out.append(text); hist.append(ins)
        if len(hist) > 64: hist = hist[-40:]
    return out, npad

class Asm:
    def __init__(self):
        self.lines = []
        self.kernels = []
        self.launches = []
        self.uid = 0
    def __call__(self, s=""):
        for l in s.split("\n"):
            l = l.strip()
            if not l or l.startswith(";"): continue
            m = re.search(r"offset:(-?\d+|0x[0-9a-fA-F]+)", l)
            if m:
                o = int(m.group(1), 0)
                if l.startswith("buffer_"): assert 0 <= o < 4096, l
                elif l.startswith("global_"): assert -4096 <= o < 4096, l
                elif l.startswith("ds_"): assert 0 <= o < 65536, l
            m = re.search(r"offset[01]:(\d+)", l)
            if m: assert int(m.group(1)) < 256, l
            self.lines.append(l if l.split(";")[0].strip().endswith(":") else "    " + l)
    def label(self, base="L"):
        self.uid += 1
        return f"{base}_{self.uid}"
    def begin_kernel(self, name):
        self.kstart = len(self.lines)
        self.lines.append(f".globl {name}")
        self.lines.append(".p2align 8")
        self.lines.append(f".type {name},@function")
        self.lines.append(f"{name}:")
    def end_kernel(self, name, vgpr=256, sgpr=102, accum=None, wgid_y=False):
        if self.prof: sgpr = 102
        mv = ms = ma = -1
        for l in self.lines[self.kstart:]:
            ins = Ins(l)
            if ins.mn is None: continue
            for o in ins.ops:
                for (t, n) in regs_of(o):
                    if t == "v": mv = max(mv, n)
                    if t == "a": ma = max(ma, n)
                    if t == "s" and n < 102: ms = max(ms, n)
        if accum is None: accum = min(256, (vgpr + 3) // 4 * 4)
        assert mv < accum and mv < vgpr, (name, "vgpr", mv, vgpr, accum)
        assert ma < 0 or accum + ma < vgpr, (name, "agpr", ma, accum, vgpr)
        assert ms < sgpr, (name, "sgpr", ms, sgpr)
        self.kernels.append((name, vgpr, sgpr, accum, wgid_y))
    def launch(self, name, grid, block, lds=0):
        self.launches.append((name, grid, block, lds))
    def text(self, single=False, pad=True):
        h = HEADER
        if single:
            name, g, b, lds = self.launches[0]
            h += f"; @launch grid=({g[0]},{g[1]},{g[2]}) block=({b[0]},{b[1]},{b[2]}) lds={lds}\n"
        else:
            for name, g, b, lds in self.launches:
                h += f"; @launch kernel={name} grid=({g[0]},{g[1]},{g[2]}) block=({b[0]},{b[1]},{b[2]}) lds={lds}\n"
        h += '.amdgcn_target "amdgcn-amd-amdhsa--gfx950"\n.text\n'
        lines = self.lines
        if pad:
            lines, n = pad_hazards(lines)
        h += "\n".join(lines) + "\n"
        h += '.section .rodata,"a"\n'
        for name, vgpr, sgpr, accum, wy in self.kernels:
            h += f".p2align 6\n.amdhsa_kernel {name}\n  .amdhsa_next_free_vgpr {vgpr}\n  .amdhsa_next_free_sgpr {sgpr}\n"
            h += f"  .amdhsa_accum_offset {accum}\n  .amdhsa_group_segment_fixed_size 0\n  .amdhsa_kernarg_size 112\n"
            h += "  .amdhsa_user_sgpr_count 2\n  .amdhsa_user_sgpr_kernarg_segment_ptr 1\n  .amdhsa_system_sgpr_workgroup_id_x 1\n"
            if wy: h += "  .amdhsa_system_sgpr_workgroup_id_y 1\n"
            h += "  .amdhsa_float_denorm_mode_32 3\n"
            h += ".end_amdhsa_kernel\n"
        return h

    def srd(self, s, arg, size=None, off=0):
        if size is None: size = SIZE[arg] - off
        self(f"s_load_dwordx2 s[{s}:{s+1}], s[0:1], {ARG[arg]}")
        self("s_waitcnt lgkmcnt(0)")
        if off:
            self(f"s_add_u32 s{s}, s{s}, {off}")
            self(f"s_addc_u32 s{s+1}, s{s+1}, 0")
        self(f"s_mov_b32 s{s+2}, {size}")
        self(f"s_mov_b32 s{s+3}, 0x20000")
    def srd_from(self, s, pair, size, off=0):
        if off:
            self(f"s_add_u32 s{s}, s{pair}, {off}")
            self(f"s_addc_u32 s{s+1}, s{pair+1}, 0")
        else:
            if s != pair:
                self(f"s_mov_b32 s{s}, s{pair}")
                self(f"s_mov_b32 s{s+1}, s{pair+1}")
        self(f"s_mov_b32 s{s+2}, {size}")
        self(f"s_mov_b32 s{s+3}, 0x20000")
    prof = False
    def prof_begin(self):
        if not self.prof: return
        self("s_memrealtime s[92:93]")
        self("s_memtime s[82:83]")
    def mreg(self, n):
        return 84 + 2*n if n < 4 else 64 + 2*(n - 4)
    def prof_mark(self, n):
        if not self.prof: return
        r = self.mreg(n)
        self(f"s_memrealtime s[{r}:{r+1}]")
    def endpgm(self, kidx, nmarks=4):
        if self.prof:
            self("s_waitcnt vmcnt(0) lgkmcnt(0)")
            self("s_memrealtime s[94:95]")
            self("s_memtime s[80:81]")
            self("s_load_dwordx2 s[96:97], s[0:1], 104")
            self("s_waitcnt lgkmcnt(0)")
            self(f"s_add_u32 s96, s96, {0x2000000 + kidx*0x40000}")
            self("s_addc_u32 s97, s97, 0")
            self("s_mov_b32 s98, 0x40000")
            self("s_mov_b32 s99, 0x20000")
            self("s_mov_b64 exec, 1")
            self("v_lshrrev_b32 v1, 6, v0")
            self("s_lshl_b32 s3, s2, 3")
            self("v_add_u32 v1, s3, v1")
            self("v_lshlrev_b32 v1, 6, v1")
            self("s_sub_u32 s80, s80, s82")
            self("v_mov_b32 v4, s92"); self("v_mov_b32 v5, s94"); self("v_mov_b32 v6, s80"); self("v_mov_b32 v7, 0x12345678")
            self("buffer_store_dwordx4 v[4:7], v1, s[96:99], 0 offen")
            for g in range(3):
                for e in range(4):
                    n = 4*g + e
                    if n < nmarks: self(f"v_mov_b32 v{8+4*g+e}, s{self.mreg(n)}")
                    else: self(f"v_mov_b32 v{8+4*g+e}, 0")
                self(f"buffer_store_dwordx4 v[{8+4*g}:{11+4*g}], v1, s[96:99], 0 offen offset:{16+16*g}")
        self("s_endpgm")
    def rb(self, v, t=None):
        t = t or v
        self(f"v_cvt_pk_bf16_f32 {t}, {v}, {v}")
        self(f"v_lshlrev_b32 {v}, 16, {t}")


class Vm:
    def __init__(self, A):
        self.A = A; self.ops = []; self.done = 0
    def op(self, text, tag):
        self.A(text); self.ops.append(tag)
        out = len(self.ops) - self.done
        assert out <= 63, f"too many outstanding vm ops ({out}) at {text}"
    def wait(self, *tags, extra=""):
        last = max(i for i, t in enumerate(self.ops) if t in tags)
        n = len(self.ops) - 1 - last
        if last + 1 > self.done:
            self.A(f"s_waitcnt vmcnt({n}){extra}")
            self.done = last + 1
        elif extra: self.A(f"s_waitcnt{extra}")
    def wait_all(self, extra=""):
        self.A(f"s_waitcnt vmcnt(0){extra}"); self.done = len(self.ops)
```

```python
import sys, os
from asmlib import *

WS_KVT=0x000000; WS_QT=0x200000; WS_X1T=0x400000; WS_R1=0x600000; WS_MR1=0x602000
WS_MOD=0x610000; WS_FLAGS=0x680000; WS_ST2=0x690000; WS_MODP=0x604000; WS_C12P=0x620000; WS_W1F=0x700000; WS_W2F=0x900000; WS_HID=0xB00000

def dpp_wave_sum(A, regs):
    for ctrl in ("row_shr:1","row_shr:2","row_shr:4","row_shr:8"):
        for r in regs:
            A(f"v_add_f32_dpp {r}, {r}, {r} {ctrl} row_mask:0xf bank_mask:0xf bound_ctrl:0")
    for r in regs: A(f"v_add_f32_dpp {r}, {r}, {r} row_bcast:15 row_mask:0xa bank_mask:0xf")
    for r in regs: A(f"v_add_f32_dpp {r}, {r}, {r} row_bcast:31 row_mask:0xc bank_mask:0xf")

def k1(A):
    k = "k1_prep_kernel"; A.begin_kernel(k)
    A("""
    s_cmp_ge_u32 s2, 256
    s_cbranch_scc1 k1_done
    """)
    A.prof_begin()
    A("""
    s_load_dwordx8 s[4:11], s[0:1], 0      ; q k v shift
    s_load_dwordx2 s[12:13], s[0:1], 32    ; ssmk
    s_load_dwordx4 s[16:19], s[0:1], 72    ; c wmod
    s_load_dwordx2 s[20:21], s[0:1], 104   ; ws
    s_and_b32 s56, s2, 7                   ; x
    s_lshr_b32 s57, s2, 3                  ; j
    s_lshr_b32 s58, s57, 3
    s_lshl_b32 s59, s56, 2
    s_add_u32 s58, s58, s59                ; rb
    s_and_b32 s59, s57, 7                  ; cb
    s_lshl_b32 s60, s58, 6                 ; row0
    s_lshl_b32 s61, s59, 7
    v_and_b32 v1, 31, v0                   ; cp
    v_lshrrev_b32 v2, 5, v0                ; rg
    v_lshlrev_b32 v3, 3, v2
    v_add_u32 v3, s60, v3
    v_lshlrev_b32 v4, 10, v3
    v_lshl_add_u32 v4, v1, 2, v4
    v_add_u32 v4, s61, v4                  ; vbase
    v_subrev_u32 v5, 3072, v4              ; vbase - 3072
    s_lshl_b32 s62, s59, 9
    v_lshlrev_b32 v6, 4, v1
    v_add_u32 v6, s62, v6
    v_lshrrev_b32 v7, 6, v0                ; wave
    v_and_b32 v35, 63, v0                  ; lane
    s_lshl_b32 s63, s56, 8
    s_lshl_b32 s64, s57, 3
    s_add_u32 s63, s63, s64
    v_lshl_add_u32 v120, v7, 1, s63
    v_lshlrev_b32 v118, 2, v120
    v_lshlrev_b32 v120, 10, v120
    v_lshl_add_u32 v120, v35, 4, v120
    s_lshl_b32 s65, s2, 13
    v_lshlrev_b32 v119, 4, v0
    v_add_u32 v119, s65, v119
    s_and_b32 s71, s2, 3
    s_lshr_b32 s72, s2, 2
    s_lshl_b32 s73, s71, 7                 ; 128 kq
    v_lshlrev_b32 v121, 4, v2
    v_add_u32 v121, s73, v121
    s_movk_i32 s74, 6144
    v_mul_lo_u32 v121, v121, s74
    s_lshl_b32 s75, s72, 7
    v_lshl_add_u32 v121, v1, 2, v121
    v_add_u32 v121, s75, v121
    v_lshl_add_u32 v122, v7, 5, v1
    v_add_u32 v122, s73, v122
    v_lshlrev_b32 v122, 1, v122            ; c offset
    s_movk_i32 s66, 0x1000
    s_waitcnt lgkmcnt(0)
    """)
    A.srd_from(24, 4, SIZE['q']); A.srd_from(28, 6, SIZE['k']); A.srd_from(32, 8, SIZE['v']); A.srd_from(36, 10, SIZE['shift'])
    A("buffer_load_dwordx4 v[36:39], v6, s[36:39], 0 offen")
    for i in range(3): A(f"buffer_load_dword v{8+i}, v5, s[28:31], 0 offen offset:{i*1024}")
    for i in range(8):
        so = "0" if i < 4 else "s66"
        A(f"buffer_load_dword v{11+i}, v4, s[28:31], {so} offen offset:{(i%4)*1024}")
    for i in range(8):
        so = "0" if i < 4 else "s66"
        A(f"buffer_load_dword v{19+i}, v4, s[32:35], {so} offen offset:{(i%4)*1024}")
    A.srd_from(76, 16, SIZE['c'])
    A.srd_from(80 - 0, 18, SIZE['wmod']) if False else None
    A("""
    s_mov_b32 s40, s18
    s_mov_b32 s41, s19
    s_cmp_lt_u32 s2, 192
    s_cselect_b32 s42, %d, 0
    s_mov_b32 s43, 0x20000
    buffer_load_ushort v123, v122, s[76:79], 0 offen
    """ % SIZE['wmod'])
    for i in range(8):
        so = "0" if i < 4 else "s66"
        A(f"buffer_load_dword v{27+i}, v4, s[24:27], {so} offen offset:{(i%4)*1024}")
    A("buffer_load_dwordx4 v[40:43], v120, s[24:27], 0 offen")
    A("buffer_load_dwordx4 v[44:47], v120, s[24:27], 0 offen offset:1024")
    for i in range(16):
        if i == 0: A(f"buffer_load_dword v124, v121, s[40:43], 0 offen")
        else:
            A(f"s_mov_b32 s62, {i*6144}")
            A(f"buffer_load_dword v{124+i}, v121, s[40:43], s62 offen")
    A.srd_from(52, 12, SIZE['ssmk'])
    A("buffer_load_dwordx4 v[48:51], v119, s[52:55], 0 offen")
    A("buffer_load_dwordx4 v[52:55], v119, s[52:55], s66 offen")
    A.srd_from(12, 20, 2048*512*2, WS_KVT); A.srd_from(44, 20, 2048*512*2, WS_QT); A.srd_from(48, 20, 0x4000, WS_R1)
    A("""
    s_lshl_b32 s62, s59, 18
    v_lshlrev_b32 v6, 13, v1
    v_add_u32 v6, s62, v6
    v_lshl_add_u32 v6, v3, 1, v6
    s_mov_b32 s67, 0x05040100
    s_mov_b32 s68, 0x07060302
    """)
    A("s_waitcnt vmcnt(37)"); A.prof_mark(0)
    A("""
    v_lshlrev_b32 v94, 16, v36
    v_lshlrev_b32 v95, 16, v38
    v_and_b32 v96, 0xffff0000, v36
    v_and_b32 v97, 0xffff0000, v38
    v_lshlrev_b32 v98, 16, v37
    v_lshlrev_b32 v99, 16, v39
    v_and_b32 v100, 0xffff0000, v37
    v_and_b32 v101, 0xffff0000, v39
    """)
    for i in range(11):
        A(f"v_lshlrev_b32 v{56+2*i}, 16, v{8+i}\nv_and_b32 v{57+2*i}, 0xffff0000, v{8+i}")
    def P(r): return f"v[{r}:{r+1}]"
    for r in range(8):
        d = 102 + 2*r
        A(f"v_pk_mul_f32 {P(d)}, {P(56+2*(r+3))}, {P(94)}")
        A(f"v_pk_fma_f32 {P(d)}, {P(56+2*(r+2))}, {P(96)}, {P(d)}")
        A(f"v_pk_fma_f32 {P(d)}, {P(56+2*(r+1))}, {P(98)}, {P(d)}")
        A(f"v_pk_fma_f32 {P(d)}, {P(56+2*r)}, {P(100)}, {P(d)}")
    A("s_waitcnt vmcnt(29)"); A.prof_mark(1)
    for i in range(8):
        A(f"v_lshlrev_b32 v{78+2*i}, 16, v{19+i}\nv_and_b32 v{79+2*i}, 0xffff0000, v{19+i}")
    for r in range(8):
        A(f"v_pk_mul_f32 {P(102+2*r)}, {P(102+2*r)}, {P(78+2*r)}")
    for e in range(2):
        for d,(a_,b_) in enumerate(((3,2),(1,0),(7,6),(5,4))):
            A(f"v_cvt_pk_bf16_f32 v{56+4*e+d}, v{102+2*a_+e}, v{102+2*b_+e}")
    A("buffer_store_dwordx4 v[56:59], v6, s[12:15], 0 offen")
    A("buffer_store_dwordx4 v[60:63], v6, s[12:15], s66 offen")
    A("s_waitcnt vmcnt(30)")
    A("""
    v_lshlrev_b32 v123, 16, v123
    v_mul_f32 v8, 0xbfb8aa3b, v123
    v_exp_f32 v8, v8
    v_add_f32 v8, 1.0, v8
    v_rcp_f32 v8, v8
    v_mul_f32 v123, v123, v8
    v_cvt_pk_bf16_f32 v123, v123, v123
    v_lshlrev_b32 v123, 16, v123
    v_lshlrev_b32 v8, 7, v7                ; wave*128
    v_lshl_add_u32 v9, v1, 2, v8           ; + (lane&31)*4
    ds_write_b32 v9, v123
    v_lshrrev_b32 v10, 5, v35              ; half
    v_lshl_add_u32 v10, v10, 6, v8
    """)
    A("s_waitcnt vmcnt(22)")
    for e in range(2):
        sel = "s67" if e == 0 else "s68"
        for d in range(4):
            A(f"v_perm_b32 v{64+4*e+d}, v{27+2*d+1}, v{27+2*d}, {sel}")
    A("buffer_store_dwordx4 v[64:67], v6, s[44:47], 0 offen")
    A("buffer_store_dwordx4 v[68:71], v6, s[44:47], s66 offen")
    A("s_waitcnt lgkmcnt(0)")
    A("ds_read_b128 v[8:11], v10\nds_read_b128 v[12:15], v10 offset:16\nds_read_b128 v[16:19], v10 offset:32\nds_read_b128 v[20:23], v10 offset:48")
    A("s_waitcnt vmcnt(22)"); A.prof_mark(2)
    A("v_mov_b32 v72, 0\nv_mov_b32 v73, 0\nv_mov_b32 v74, 0\nv_mov_b32 v75, 0")
    A("s_mov_b32 s69, 0x3f803f80")
    for i in range(4):
        A(f"v_dot2c_f32_bf16 v72, s69, v{40+i}")
        A(f"v_dot2c_f32_bf16 v73, v{40+i}, v{40+i}")
        A(f"v_dot2c_f32_bf16 v74, s69, v{44+i}")
        A(f"v_dot2c_f32_bf16 v75, v{44+i}, v{44+i}")
    dpp_wave_sum(A, ["v72","v73","v74","v75"])
    A("""
    v_mul_f32 v72, 0x3b000000, v72
    v_mul_f32 v74, 0x3b000000, v74
    v_mul_f32 v73, 0x3b000000, v73
    v_mul_f32 v75, 0x3b000000, v75
    v_fma_f32 v73, -v72, v72, v73
    v_fma_f32 v75, -v74, v74, v75
    v_max_f32 v73, 0, v73
    v_max_f32 v75, 0, v75
    v_add_f32 v73, 0x3727c5ac, v73
    v_add_f32 v75, 0x3727c5ac, v75
    v_rsq_f32 v76, v73
    v_rsq_f32 v77, v75
    s_nop 0
    v_mul_f32 v78, v72, v76
    v_mul_f32 v79, v74, v77
    s_mov_b32 exec_lo, 0
    s_mov_b32 exec_hi, 0x80000000
    s_movk_i32 s70, 0x2000
    buffer_store_dwordx2 v[76:77], v118, s[48:51], 0 offen
    buffer_store_dwordx2 v[78:79], v118, s[48:51], s70 offen
    s_mov_b64 exec, -1
    s_cmp_ge_u32 s2, 192
    s_cbranch_scc1 k1_end
    """)
    A("v_mov_b32 v40, 0\nv_mov_b32 v41, 0\ns_waitcnt vmcnt(8) lgkmcnt(0)"); A.prof_mark(3)
    for i in range(16):
        A(f"v_lshlrev_b32 v42, 16, v{124+i}\nv_and_b32 v43, 0xffff0000, v{124+i}")
        A(f"v_fmac_f32 v40, v42, v{8+i}\nv_fmac_f32 v41, v43, v{8+i}")
    A("""
    v_mov_b32 v42, v40
    v_mov_b32 v43, v41
    v_permlane32_swap_b32 v40, v42
    v_permlane32_swap_b32 v41, v43
    v_add_f32 v40, v40, v42
    v_add_f32 v41, v41, v43
    v_lshlrev_b32 v5, 8, v7
    v_lshl_add_u32 v5, v1, 3, v5
    ds_write_b64 v5, v[40:41] offset:1024
    s_waitcnt lgkmcnt(0)
    s_barrier
    v_lshlrev_b32 v5, 2, v0
    v_cmp_gt_u32 vcc, 64, v0
    s_and_saveexec_b64 s[64:65], vcc
    s_cbranch_execz k1_end
    ds_read_b32 v8, v5 offset:1024
    ds_read_b32 v9, v5 offset:1280
    ds_read_b32 v10, v5 offset:1536
    ds_read_b32 v11, v5 offset:1792
    """)
    A.srd_from(32, 20, 4*3072*4, WS_MODP)
    A("""
    s_mul_i32 s59, s71, 12288
    s_lshl_b32 s61, s72, 8
    s_add_u32 s59, s59, s61
    s_waitcnt lgkmcnt(0)
    v_add_f32 v8, v8, v9
    v_add_f32 v10, v10, v11
    v_add_f32 v8, v8, v10
    buffer_store_dword v8, v5, s[32:35], s59 offen
k1_end:
    s_mov_b64 exec, -1
    """)
    A.srd_from(32, 20, 0x8000, WS_FLAGS)
    A("""
    v_mov_b32 v8, 0
    v_mov_b32 v9, 0
    v_mov_b32 v10, 0
    v_mov_b32 v11, 0
    v_lshlrev_b32 v5, 4, v0
    s_lshl_b32 s59, s2, 7
    v_cmp_gt_u32 vcc, 8, v0
    s_and_saveexec_b64 s[64:65], vcc
    s_cbranch_execz k1_end2
    buffer_store_dwordx4 v[8:11], v5, s[32:35], s59 offen
k1_end2:
    s_mov_b64 exec, -1
    """)
    A.endpgm(0)
    A("k1_done:\ns_endpgm")
    A.end_kernel(k, vgpr=140, sgpr=80)
    A.launch(k, (256,1,1), (256,1,1), lds=2048)

H_COPY = 4160; H_CH = 4*H_COPY
U_BASE = 2*H_CH
U_CH = 4608
X_BASE = U_BASE + 2*U_CH
K2_LDS = X_BASE + 4*4096

def side_body(A):
    A("""
    s_sub_u32 s63, s2, 256                 ; unit u
    s_load_dwordx4 s[4:7], s[0:1], 56      ; w1, w2
    s_load_dwordx2 s[8:9], s[0:1], 104     ; ws
    v_lshrrev_b32 v1, 6, v0
    v_and_b32 v2, 63, v0                   ; fp
    v_readfirstlane_b32 s10, v1            ; dg
    s_and_b32 s11, s63, 15                 ; db
    s_lshr_b32 s12, s63, 4                 ; fb
    s_lshl_b32 s13, s11, 5
    s_lshl_b32 s14, s10, 3
    s_add_u32 s13, s13, s14                ; d0
    s_waitcnt lgkmcnt(0)
    """)
    A.srd_from(16, 4, SIZE['w1']); A.srd_from(20, 6, SIZE['w2'])
    A.srd_from(64, 8, 4*3072*4, WS_MODP)
    A(f"""
    v_lshrrev_b32 v60, 3, v2
    v_and_b32 v61, 7, v2
    v_lshlrev_b32 v60, 11, v60
    v_lshl_add_u32 v60, v61, 2, v60
    s_lshl_b32 s14, s13, 2
    s_add_u32 s14, s14, {3*2048}
    buffer_load_dword v61, v60, s[64:67], s14 offen
    s_add_u32 s14, s14, 12288
    buffer_load_dword v62, v60, s[64:67], s14 offen
    s_add_u32 s14, s14, 12288
    buffer_load_dword v63, v60, s[64:67], s14 offen
    s_add_u32 s14, s14, 12288
    buffer_load_dword v64, v60, s[64:67], s14 offen
    s_and_b32 s14, s63, 1
    s_lshl_b32 s14, s14, 10
    s_add_u32 s14, s14, {5*2048}
    v_lshlrev_b32 v65, 2, v0
    buffer_load_dword v66, v65, s[64:67], s14 offen
    s_add_u32 s15, s14, 12288
    buffer_load_dword v67, v65, s[64:67], s15 offen
    s_add_u32 s15, s15, 12288
    buffer_load_dword v68, v65, s[64:67], s15 offen
    s_add_u32 s15, s15, 12288
    buffer_load_dword v69, v65, s[64:67], s15 offen
    s_mov_b32 s68, s14
    s_lshl_b32 s14, s12, 8
    v_lshlrev_b32 v3, 2, v2
    v_add_u32 v3, s14, v3
    s_mul_i32 s14, s13, 3584
    """)
    for i in range(8):
        A(f"buffer_load_dword v{8+i}, v3, s[16:19], s14 offen")
        if i < 7: A("s_add_u32 s14, s14, 3584")
    A("""
    s_lshr_b32 s26, s63, 2                 ; F
    s_lshr_b32 s27, s63, 1
    s_and_b32 s27, s27, 1                  ; a
    s_and_b32 s28, s63, 1                  ; g
    s_lshl_b32 s29, s26, 5
    s_lshl_b32 s30, s27, 4
    s_add_u32 s29, s29, s30
    s_lshl_b32 s30, s28, 2
    s_add_u32 s29, s29, s30
    s_lshl_b32 s29, s29, 10
    v_lshlrev_b32 v4, 2, v0
    """)
    for j in range(8):
        A(f"s_add_u32 s30, s29, {(8*(j>>2) + (j&3))*1024}")
        A(f"buffer_load_dword v{16+j}, v4, s[20:23], s30 offen")
    A.srd_from(48, 8, SIZE['w1'], WS_W1F); A.srd_from(52, 8, SIZE['w2'], WS_W2F); A.srd_from(56, 8, 16*2*1792*4, WS_C12P)
    A("""
    s_mov_b32 s60, 0x05040100
    s_mov_b32 s61, 0x07060302
    s_mov_b32 s62, 0x3f803f80
    s_waitcnt vmcnt(16)
    v_add_f32 v61, v61, v62
    v_add_f32 v63, v63, v64
    v_add_f32 v66, v66, v67
    v_add_f32 v68, v68, v69
    v_add_f32 v61, v61, v63
    v_add_f32 v66, v66, v68
    v_cvt_pk_bf16_f32 v61, v61, v66
    v_and_b32 v66, 0xffff0000, v61
    v_lshlrev_b32 v61, 16, v61
    v_add_f32 v62, 1.0, v61
    v_cvt_pk_bf16_f32 v62, v62, v62
    v_lshlrev_b32 v62, 16, v62
    """)
    for i in range(8):
        A(f"v_readlane_b32 s{32+i}, v61, {i}\nv_readlane_b32 s{40+i}, v62, {8+i}")
    A.srd_from(64, 8, 3072*4, WS_MOD)
    A("""
    s_cmp_ge_u32 s63, 2
    s_cbranch_scc1 side_nogb
    buffer_store_dword v66, v65, s[64:67], s68 offen
side_nogb:
    s_waitcnt vmcnt(8)
    """)
    for i in range(8):
        A(f"v_lshlrev_b32 v{24+i}, 16, v{8+i}\nv_and_b32 v{32+i}, 0xffff0000, v{8+i}")
    A("v_mul_f32 v42, s32, v24\nv_mul_f32 v43, s32, v32")
    for i in range(1, 8):
        A(f"v_fmac_f32 v42, s{32+i}, v{24+i}\nv_fmac_f32 v43, s{32+i}, v{32+i}")
    for i in range(8):
        A(f"v_mul_f32 v{24+i}, s{40+i}, v{24+i}\nv_mul_f32 v{32+i}, s{40+i}, v{32+i}")
    for d in range(4):
        A(f"v_cvt_pk_bf16_f32 v{44+d}, v{24+2*d}, v{25+2*d}")
        A(f"v_cvt_pk_bf16_f32 v{48+d}, v{32+2*d}, v{33+2*d}")
    A("v_mov_b32 v40, 0\nv_mov_b32 v41, 0")
    for d in range(4):
        A(f"v_dot2c_f32_bf16 v40, s62, v{44+d}\nv_dot2c_f32_bf16 v41, s62, v{48+d}")
    A("""
    s_lshl_b32 s14, s12, 17
    s_lshl_b32 s15, s11, 11
    s_add_u32 s14, s14, s15
    s_lshr_b32 s15, s10, 1
    s_lshl_b32 s15, s15, 10
    s_add_u32 s14, s14, s15
    s_and_b32 s15, s10, 1
    s_lshl_b32 s15, s15, 9
    s_add_u32 s14, s14, s15
    v_lshrrev_b32 v5, 4, v2
    v_lshlrev_b32 v5, 15, v5
    v_and_b32 v6, 15, v2
    v_lshl_add_u32 v5, v6, 5, v5
    buffer_store_dwordx4 v[44:47], v5, s[48:51], s14 offen
    buffer_store_dwordx4 v[48:51], v5, s[48:51], s14 offen offset:16
    v_lshlrev_b32 v6, 4, v2
    s_lshl_b32 s15, s10, 10
    v_add_u32 v6, s15, v6
    ds_write_b128 v6, v[40:43]
    s_waitcnt vmcnt(2)
    """)
    for e in range(2):
        sel = "s60" if e == 0 else "s61"
        for d in range(4):
            A(f"v_perm_b32 v{52+4*e+d}, v{16+2*d+1}, v{16+2*d}, {sel}")
    A("""
    v_lshrrev_b32 v5, 5, v0
    s_mov_b32 s15, 229376
    v_mul_lo_u32 v5, v5, s15
    v_lshrrev_b32 v6, 4, v0
    v_and_b32 v6, 1, v6
    v_lshl_add_u32 v5, v6, 10, v5
    v_and_b32 v6, 15, v0
    v_lshl_add_u32 v5, v6, 5, v5
    s_lshl_b32 s14, s26, 12
    s_lshl_b32 s15, s27, 11
    s_add_u32 s14, s14, s15
    s_lshl_b32 s15, s28, 9
    s_add_u32 s14, s14, s15
    buffer_store_dwordx4 v[52:55], v5, s[52:55], s14 offen
    buffer_store_dwordx4 v[56:59], v5, s[52:55], s14 offen offset:16
    s_waitcnt lgkmcnt(0)
    s_barrier
    v_and_b32 v6, 127, v0
    v_lshrrev_b32 v7, 7, v0
    v_lshrrev_b32 v5, 1, v6
    v_lshlrev_b32 v5, 4, v5
    v_lshl_add_u32 v5, v7, 3, v5
    v_and_b32 v8, 1, v0
    v_lshl_add_u32 v5, v8, 2, v5
    ds_read_b32 v8, v5
    ds_read_b32 v9, v5 offset:1024
    ds_read_b32 v10, v5 offset:2048
    ds_read_b32 v11, v5 offset:3072
    v_mul_u32_u24 v7, 7168, v7
    v_lshl_add_u32 v7, v6, 2, v7
    s_mul_i32 s14, s11, 14336
    s_lshl_b32 s15, s12, 9
    s_add_u32 s14, s14, s15
    s_waitcnt lgkmcnt(0)
    v_add_f32 v8, v8, v9
    v_add_f32 v10, v10, v11
    v_add_f32 v8, v8, v10
    buffer_store_dword v8, v7, s[56:59], s14 offen
    """)

def k2(A, side=None):
    k = "k2_conv_kernel"; A.begin_kernel(k)
    A("""
    s_cmp_ge_u32 s2, 480
    s_cbranch_scc1 k2_done
    """)
    A.prof_begin()
    A("""
    s_cmp_ge_u32 s2, 256
    s_cbranch_scc1 k2_side
    """)
    A("""
    s_load_dwordx4 s[4:7], s[0:1], 32
    s_load_dwordx2 s[8:9], s[0:1], 104     ; ws
    v_lshrrev_b32 v1, 6, v0
    v_and_b32 v2, 63, v0                   ; lane
    v_readfirstlane_b32 s10, v1            ; wave
    s_lshr_b32 s11, s10, 1                 ; c
    s_and_b32 s12, s10, 1                  ; pi
    s_lshl_b32 s13, s2, 1
    s_add_u32 s13, s13, s11                ; ch
    s_lshl_b32 s14, s13, 12                ; ch*4096
    v_and_b32 v3, 15, v2                   ; n (or i)
    v_lshrrev_b32 v4, 4, v2                ; g
    s_waitcnt lgkmcnt(0)
    """)
    A("""
    s_add_u32 s16, s4, s14
    s_addc_u32 s17, s5, 0
    s_mov_b32 s18, 4096
    s_mov_b32 s19, 0x20000
    s_add_u32 s20, s8, s14
    s_addc_u32 s21, s9, 0
    s_mov_b32 s22, 4096
    s_mov_b32 s23, 0x20000
    """)
    A("""
    s_lshl_b32 s15, s12, 11                ; pi*128*16
    v_lshlrev_b32 v5, 4, v2
    v_add_u32 v5, s15, v5                  ; 16 a  (i=0)
    v_subrev_u32 v6, 8, v5                 ; 16 a - 8
    buffer_load_dwordx2 v[8:9], v6, s[16:19], 0 offen
    buffer_load_dwordx4 v[10:13], v5, s[16:19], 0 offen
    buffer_load_dwordx2 v[14:15], v6, s[16:19], 0 offen offset:1024
    buffer_load_dwordx4 v[16:19], v5, s[16:19], 0 offen offset:1024
    ; u DMA: this wave loads bytes [pi*2048, +2048) of the row -> LDS U_c + 512 + pi*2048
    s_mul_i32 s36, s11, %d
    s_add_u32 s36, s36, %d
    s_lshl_b32 s37, s12, 11
    s_add_u32 s38, s36, s37
    s_add_u32 s38, s38, 512
    v_lshlrev_b32 v7, 4, v2
    v_add_u32 v7, s37, v7
    s_mov_b32 m0, s38
    s_nop 0
    buffer_load_dwordx4 v7, s[20:23], 0 offen lds
    s_add_u32 s38, s38, 1024
    s_mov_b32 m0, s38
    s_nop 0
    v_add_u32 v20, 1024, v7
    buffer_load_dwordx4 v20, s[20:23], 0 offen lds
    """ % (U_CH, U_BASE))
    A(f"""
    s_add_u32 s24, s8, {WS_QT}
    s_addc_u32 s25, s9, 0
    s_add_u32 s24, s24, s14
    s_addc_u32 s25, s25, 0
    s_mov_b32 s26, 4096
    s_mov_b32 s27, 0x20000
    s_add_u32 s28, s8, {WS_X1T}
    s_addc_u32 s29, s9, 0
    s_add_u32 s28, s28, s14
    s_addc_u32 s29, s29, 0
    s_mov_b32 s30, 4096
    s_mov_b32 s31, 0x20000
    s_add_u32 s32, s8, {WS_R1}
    s_addc_u32 s33, s9, 0
    s_mov_b32 s34, 0x4000
    s_mov_b32 s35, 0x20000
    v_lshlrev_b32 v192, 4, v3
    v_lshl_add_u32 v192, v4, 2, v192         ; vS = 16n + 4g
    s_lshl_b32 s39, s12, 10
    v_add_u32 v192, s39, v192
    v_lshlrev_b32 v193, 1, v192              ; *2 bytes  (q, x1, u)
    v_lshlrev_b32 v194, 2, v192
    s_movk_i32 s40, 0x2000
    """)
    QR = 200; SR = 208
    for tt in range(4):
        A(f"buffer_load_dwordx2 v[{QR+2*tt}:{QR+2*tt+1}], v193, s[24:27], 0 offen offset:{512*tt}")
    for tt in range(4):
        A(f"buffer_load_dwordx4 v[{SR+4*tt}:{SR+4*tt+3}], v194, s[32:35], 0 offen offset:{1024*tt}")
        A(f"buffer_load_dwordx4 v[{SR+16+4*tt}:{SR+16+4*tt+3}], v194, s[32:35], s40 offen offset:{1024*tt}")
    A(f"""
    s_lshl_b32 s41, s13, 2
    s_add_u32 s42, s8, {WS_MODP}
    s_addc_u32 s43, s9, 0
    s_add_u32 s42, s42, s41
    s_addc_u32 s43, s43, 0
    """)
    for v in range(3):
        for kq in range(4):
            A(f"s_load_dword s{44+4*v+kq}, s[42:43], {kq*12288 + v*2048}")
    A("""
    s_lshl_b32 s41, s2, 2
    s_add_u32 s6, s6, s41
    s_addc_u32 s7, s7, 0
    s_load_dword s56, s[6:7], 0
    """)
    A(f"""
    v_mov_b32 v24, 0
    v_mov_b32 v25, 0
    v_mov_b32 v26, 0
    v_mov_b32 v27, 0
    s_mul_i32 s57, s11, {H_CH}             ; H_c
    v_lshlrev_b32 v28, 4, v2
    v_add_u32 v28, s36, v28
    v_subrev_u32 v29, 32, v2
    v_lshrrev_b32 v30, 1, v29
    v_mul_u32_u24 v30, {H_COPY}, v30
    v_and_b32 v29, 1, v2
    v_lshl_add_u32 v30, v29, 4, v30
    v_add_u32 v30, s57, v30
    v_cmp_gt_u32 vcc, 32, v2
    v_cndmask_b32 v28, v30, v28, vcc
    v_cmp_gt_u32 vcc, 40, v2
    s_cmp_eq_u32 s12, 0
    s_cselect_b64 s[58:59], vcc, 0
    s_mov_b64 exec, s[58:59]
    s_cbranch_execz k2_nozero
    ds_write_b128 v28, v[24:27]
k2_nozero:
    s_mov_b64 exec, -1
    """)
    A("s_waitcnt vmcnt(14)"); A.prof_mark(0)
    A(f"""
    ; W address: H_c + 16 a + 32
    v_add_u32 v31, s57, v5
    v_cmp_eq_u32 vcc, 0, v5
    v_cndmask_b32 v8, v8, v24, vcc
    v_cndmask_b32 v9, v9, v24, vcc
    """)
    for i,(b) in enumerate((8, 14)):
        d2,d3,d4,d5,d6,d7 = [f"v{b+j}" for j in range(6)]
        off = 32 + 1024*i
        A(f"ds_write_b128 v31, v[{b+2}:{b+5}] offset:{off + 3*H_COPY}")
        A(f"v_mov_b32 v32, {d3}\nv_mov_b32 v33, {d4}\nv_mov_b32 v34, {d5}\nv_mov_b32 v35, {d6}")
        A(f"ds_write_b128 v31, v[32:35] offset:{off + 1*H_COPY}")
        A(f"v_alignbit_b32 v36, {d3}, {d2}, 16\nv_alignbit_b32 v37, {d4}, {d3}, 16\nv_alignbit_b32 v38, {d5}, {d4}, 16\nv_alignbit_b32 v39, {d6}, {d5}, 16")
        A(f"ds_write_b128 v31, v[36:39] offset:{off + 0*H_COPY}")
        A(f"v_alignbit_b32 v40, {d4}, {d3}, 16\nv_alignbit_b32 v41, {d5}, {d4}, 16\nv_alignbit_b32 v42, {d6}, {d5}, 16\nv_alignbit_b32 v43, {d7}, {d6}, 16")
        A(f"ds_write_b128 v31, v[40:43] offset:{off + 2*H_COPY}")
    A(f"""
    s_lshl_b32 s60, s12, 6
    s_sub_u32 s61, s36, s60
    s_add_u32 s61, s61, 96
    v_lshlrev_b32 v44, 5, v3
    v_lshl_add_u32 v44, v4, 4, v44
    v_add_u32 v44, s61, v44
    s_add_u32 s62, s57, s60
    s_add_u32 s62, s62, 56
    v_and_b32 v45, 3, v3
    v_mul_u32_u24 v45, {H_COPY}, v45
    v_lshrrev_b32 v46, 2, v3
    v_lshl_add_u32 v45, v46, 3, v45
    v_lshlrev_b32 v46, 4, v4
    v_sub_u32 v45, v45, v46
    v_add_u32 v45, s62, v45
    s_waitcnt vmcnt(12) lgkmcnt(0)
    s_barrier
    """)
    A.prof_mark(1)
    BR = 64
    ACC = 32+16
    ACC = 8
    AB = 48
    for s in range(32):
        A(f"ds_read_b128 v[{BR+4*s}:{BR+4*s+3}], v44 offset:{128*s}")
        if s == 14 or s==29: A("s_waitcnt lgkmcnt(4)")
    order = []
    for i in range(16): order += [31 - i, i]
    def rdA(idx):
        mu = order[idx]; b = AB + 4*(idx % 4)
        A(f"ds_read_b64 v[{b}:{b+1}], v45 offset:{128*mu+8}")
        A(f"ds_read_b64 v[{b+2}:{b+3}], v45 offset:{128*mu}")
    rdA(0); rdA(1)
    touched = set()
    for idx in range(32):
        if idx + 2 < 32:
            rdA(idx + 2)
            A("s_waitcnt lgkmcnt(4)")
        elif idx + 1 < 32: A("s_waitcnt lgkmcnt(2)")
        else: A("s_waitcnt lgkmcnt(0)")
        mu = order[idx]; b = AB + 4*(idx % 4)
        for t in range(mu // 4, 8):
            sl = 4*t - mu + 3
            acc = f"v[{ACC+4*t}:{ACC+4*t+3}]"
            c = acc if t in touched else "0"
            touched.add(t)
            A(f"v_mfma_f32_16x16x32_bf16 {acc}, v[{b}:{b+3}], v[{BR+4*sl}:{BR+4*sl+3}], {c}")
    A.prof_mark(2)
    A("""
    s_cmp_eq_u32 s12, 0
    s_cbranch_scc1 k2_noswap
    """)
    for i in range(16): A(f"v_swap_b32 v{ACC+i}, v{ACC+16+i}")
    A(f"""
k2_noswap:
    s_lshl_b32 s63, s10, 12
    s_add_u32 s63, s63, {X_BASE}
    v_lshlrev_b32 v46, 4, v2
    v_add_u32 v47, s63, v46
    s_xor_b32 s63, s10, 1
    s_lshl_b32 s63, s63, 12
    s_add_u32 s63, s63, {X_BASE}
    v_add_u32 v46, s63, v46
    """)
    for tt in range(4):
        A(f"ds_write_b128 v47, v[{ACC+16+4*tt}:{ACC+16+4*tt+3}] offset:{1024*tt}")
    A(f"s_add_u32 s64, s36, 512\nv_add_u32 v48, s64, v193")
    for tt in range(4):
        A(f"ds_read_b64 v[{50+2*tt}:{51+2*tt}], v48 offset:{512*tt}")
    A("""
    s_waitcnt lgkmcnt(0)
    s_barrier
    """)
    A.prof_mark(3)
    for tt in range(4):
        A(f"ds_read_b128 v[{64+4*tt}:{64+4*tt+3}], v46 offset:{1024*tt}")
    A("""
    v_mov_b32 v80, s44
    v_add_f32 v80, s45, v80
    v_add_f32 v80, s46, v80
    v_add_f32 v80, s47, v80
    v_mov_b32 v81, s48
    v_add_f32 v81, s49, v81
    v_add_f32 v81, s50, v81
    v_add_f32 v81, s51, v81
    v_mov_b32 v82, s52
    v_add_f32 v82, s53, v82
    v_add_f32 v82, s54, v82
    v_add_f32 v82, s55, v82
    """)
    A.rb("v80"); A.rb("v81"); A.rb("v82")
    A("v_add_f32 v81, 1.0, v81"); A.rb("v81")
    A("""
    s_lshl_b32 s65, s11, 4
    s_lshr_b32 s56, s56, s65
    s_lshl_b32 s56, s56, 16               ; D as f32
    s_waitcnt vmcnt(0) lgkmcnt(0)
    """)
    for tt in range(4):
        for r in range(4):
            y = f"v{ACC+4*tt+r}"
            A(f"v_add_f32 {y}, {y}, v{64+4*tt+r}")
        qd = [QR+2*tt, QR+2*tt+1]; ud = [50+2*tt, 51+2*tt]
        for r in range(4):
            y = f"v{ACC+4*tt+r}"
            qreg = f"v{qd[r>>1]}"; ureg = f"v{ud[(3-r)>>1]}"
            if r & 1: A(f"v_and_b32 v84, 0xffff0000, {qreg}")
            else: A(f"v_lshlrev_b32 v84, 16, {qreg}")
            if (3-r) & 1: A(f"v_and_b32 v85, 0xffff0000, {ureg}")
            else: A(f"v_lshlrev_b32 v85, 16, {ureg}")
            A(f"v_fma_f32 {y}, v85, s56, {y}")
            A(f"v_fma_f32 v86, v84, v{SR+4*tt+r}, -v{SR+16+4*tt+r}")
            A(f"v_fma_f32 v86, v86, v81, v80")
            A(f"v_mul_f32 v86, v86, {y}")
            A(f"v_fma_f32 {y}, v86, v82, v84")
        A(f"v_cvt_pk_bf16_f32 v{88+2*tt}, v{ACC+4*tt}, v{ACC+4*tt+1}")
        A(f"v_cvt_pk_bf16_f32 v{89+2*tt}, v{ACC+4*tt+2}, v{ACC+4*tt+3}")
        A(f"buffer_store_dwordx2 v[{88+2*tt}:{89+2*tt}], v193, s[28:31], 0 offen offset:{512*tt}")
    A("""
    """)
    A.endpgm(1)
    A("k2_side:")
    side_body(A)
    A.endpgm(1)
    A("k2_done:\ns_endpgm")
    A.end_kernel(k, vgpr=240, sgpr=80)
    A.launch(k, (480,1,1), (256,1,1), lds=K2_LDS)


K3_C = 131072; K3_ST = K3_C + 1024; K3_LDS = K3_ST + 1024
def k3(A):
    k = "k3_gemm1_kernel"; A.begin_kernel(k)
    A(f"""
    s_cmp_ge_u32 s2, 224
    s_cbranch_scc1 k3_done
    """)
    A.prof_begin()
    A("""
    s_load_dwordx2 s[8:9], s[0:1], 104     ; ws
    v_lshrrev_b32 v1, 6, v0
    v_and_b32 v2, 63, v0                   ; lane
    v_readfirstlane_b32 s10, v1            ; wave
    s_and_b32 s11, s2, 7                   ; x
    s_lshr_b32 s12, s2, 3                  ; j
    s_lshr_b32 s13, s11, 1
    s_lshl_b32 s13, s13, 2
    s_and_b32 s14, s12, 3
    s_add_u32 s13, s13, s14                ; rbk
    s_and_b32 s14, s11, 1
    s_mul_i32 s14, s14, 7
    s_lshr_b32 s15, s12, 2
    s_add_u32 s14, s14, s15                ; fb
    s_lshl_b32 s15, s14, 2
    s_add_u32 s15, s15, s10                ; F
    s_waitcnt lgkmcnt(0)
    """)
    A.srd_from(16, 8, 2048*512*2, WS_X1T)
    A(f"""
    s_lshl_b32 s3, s15, 15
    s_add_u32 s20, s8, {WS_W1F}
    s_addc_u32 s21, s9, 0
    s_add_u32 s20, s20, s3
    s_addc_u32 s21, s21, 0
    s_mov_b32 s22, 32768
    s_mov_b32 s23, 0x20000
    """)
    A.srd_from(24, 8, 16*2*1792*4, WS_C12P); A.srd_from(28, 8, 2048*1792*2, WS_HID)
    A("""
    v_and_b32 v3, 127, v0
    v_lshrrev_b32 v4, 7, v0
    v_mul_u32_u24 v4, 7168, v4
    v_lshl_add_u32 v4, v3, 2, v4
    s_lshl_b32 s3, s14, 9
    v_add_u32 v4, s3, v4
    s_mov_b32 s3, 0
    """)
    for db in range(16):
        A(f"buffer_load_dword v{200+db}, v4, s[24:27], s3 offen")
        if db < 15: A("s_add_u32 s3, s3, 14336")
    A("""
    v_lshrrev_b32 v5, 4, v2                ; row
    v_and_b32 v6, 15, v2                   ; p
    v_lshlrev_b32 v7, 2, v5
    v_xor_b32 v6, v6, v7
    v_lshlrev_b32 v6, 4, v6
    v_lshl_add_u32 v6, v5, 12, v6
    s_lshl_b32 s3, s13, 8
    v_add_u32 v6, s3, v6
    v_lshlrev_b32 v7, 4, v2                ; lane*16
    s_lshl_b32 s32, s10, 16
    s_lshl_b32 s33, s10, 12
    """)
    WR = 64
    def issue(c):
        for i in range(4):
            A(f"s_add_u32 s34, s32, {(64*c+4*i)*4096}")
            A(f"s_add_u32 m0, s33, {(64*c+4*i)*256}")
            A("s_nop 0")
            A(f"buffer_load_dwordx4 v6, s[16:19], s34 offen lds")
        A(f"s_mov_b32 s34, {c*4096}")
        for i in range(4):
            kk = 4*c+i
            A(f"buffer_load_dwordx4 v[{WR+4*kk}:{WR+4*kk+3}], v7, s[20:23], s34 offen offset:{i*1024}")
    for c in range(5): issue(c)
    A("s_waitcnt vmcnt(40)"); A.prof_mark(0)
    for i in range(8): A(f"v_add_f32 v{200+i}, v{200+i}, v{208+i}")
    for i in range(4): A(f"v_add_f32 v{200+i}, v{200+i}, v{204+i}")
    A("v_add_f32 v200, v200, v201\nv_add_f32 v202, v202, v203\nv_add_f32 v200, v200, v202")
    A(f"v_lshlrev_b32 v4, 2, v0\nds_write_b32 v4, v200 offset:0\n".replace("offset:0", f"offset:{0}") if False else "")
    A(f"v_lshlrev_b32 v4, 2, v0\nv_add_u32 v4, {K3_C}, v4\nds_write_b32 v4, v200")
    issue(5); issue(6)
    A("""
    v_lshrrev_b32 v12, 4, v2               ; G
    v_lshrrev_b32 v13, 2, v2
    v_and_b32 v13, 3, v13                  ; r
    v_and_b32 v14, 3, v2                   ; c4
    v_lshrrev_b32 v15, 1, v12              ; G>>1
    v_lshl_add_u32 v15, v15, 3, v13        ; 8(G>>1)+r
    v_lshlrev_b32 v15, 8, v15              ; *256
    v_and_b32 v16, 1, v12
    v_lshlrev_b32 v16, 1, v16
    v_lshrrev_b32 v17, 1, v14
    v_add_u32 v16, v16, v17                ; low2
    v_lshl_add_u32 v15, v16, 4, v15
    v_and_b32 v17, 1, v14
    v_lshl_add_u32 v15, v17, 3, v15
    """)
    for sl in range(4):
        A(f"s_add_u32 s35, s10, {sl}\ns_and_b32 s35, s35, 3\nv_xor_b32 v17, s35, v13\nv_lshl_add_u32 v{8+sl}, v17, 6, v15")
    ACC = 192
    BB = 16
    A("v_mov_b32 v48, 0\nv_mov_b32 v49, 0\ns_mov_b32 s36, 0x3f803f80")
    def rdB1(kap, sl):
        b = BB + 16*(kap & 1)
        off = 4096*(kap & 15)
        A(f"ds_read_b64_tr_b16 v[{b+4*sl}:{b+4*sl+1}], v{8+sl} offset:{off}")
        A(f"ds_read_b64_tr_b16 v[{b+4*sl+2}:{b+4*sl+3}], v{8+sl} offset:{off+1024}")
    def chunk_wait(c):
        if c == 0:
            A("s_waitcnt vmcnt(48) lgkmcnt(0)\ns_barrier"); issue(7)
        else:
            A(f"s_waitcnt vmcnt({8*(7-c)})\ns_barrier")
    chunk_wait(0)
    A.prof_mark(1)
    if os.environ.get("K3_PREWAIT"):
        A("s_waitcnt vmcnt(0)\ns_barrier"); A.prof_mark(0)
    for sl in range(4): rdB1(0, sl)
    nodot = os.environ.get("K3_NODOT")
    for kap in range(32):
        nxt = kap + 1 < 32
        if nxt and (kap + 1) % 4 == 0: chunk_wait((kap+1)//4)
        if kap + 1 == 16:
            for sl in range(4): A(f"v_add_u32 v{8+sl}, 0x10000, v{8+sl}")
        b = BB + 16*(kap & 1)
        for sl in range(4):
            if nxt: A(f"s_waitcnt lgkmcnt(6)")
            else: A(f"s_waitcnt lgkmcnt({2*(3-sl)})")
            acc = f"v[{ACC+16*sl}:{ACC+16*sl+15}]"
            c = acc if kap > 0 else "0"
            A(f"v_mfma_f32_32x32x16_bf16 {acc}, v[{WR+4*kap}:{WR+4*kap+3}], v[{b+4*sl}:{b+4*sl+3}], {c}")
            if nxt: rdB1(kap + 1, sl)
            if not nodot:
                d = sl
                A(f"v_dot2c_f32_bf16 v48, s36, v{b+d}\nv_dot2c_f32_bf16 v49, v{b+d}, v{b+d}")
    A.prof_mark(2)
    A(f"""
    v_mov_b32 v50, v48
    v_mov_b32 v51, v49
    v_permlane32_swap_b32 v48, v50
    v_permlane32_swap_b32 v49, v51
    v_add_f32 v48, v48, v50
    v_add_f32 v49, v49, v51
    v_mul_f32 v48, 0x3b000000, v48
    v_mul_f32 v49, 0x3b000000, v49
    v_fma_f32 v49, -v48, v48, v49
    v_max_f32 v49, 0, v49
    v_add_f32 v49, 0x3727c5ac, v49
    v_rsq_f32 v50, v49
    s_nop 0
    v_mul_f32 v51, v48, v50
    v_and_b32 v52, 31, v2
    v_lshlrev_b32 v52, 3, v52
    s_lshl_b32 s37, s10, 8
    s_add_u32 s37, s37, {K3_ST}
    v_add_u32 v53, s37, v52
    ds_write_b64 v53, v[50:51]
    s_waitcnt lgkmcnt(0)
    s_barrier
    """)
    A.prof_mark(3)
    for sl in range(4):
        A(f"s_add_u32 s37, s10, {sl}\ns_and_b32 s37, s37, 3\ns_lshl_b32 s37, s37, 8\ns_add_u32 s37, s37, {K3_ST}\nv_add_u32 v53, s37, v52\nds_read_b64 v[{56+2*sl}:{57+2*sl}], v53")
    A(f"""
    v_lshrrev_b32 v54, 5, v2
    v_lshlrev_b32 v54, 4, v54
    s_lshl_b32 s37, s10, 7
    s_add_u32 s37, s37, {K3_C}
    v_add_u32 v54, s37, v54
    """)
    for q in range(4):
        A(f"ds_read_b128 v[{64+4*q}:{64+4*q+3}], v54 offset:{32*q}")
        A(f"ds_read_b128 v[{80+4*q}:{80+4*q+3}], v54 offset:{512+32*q}")
    A("s_waitcnt lgkmcnt(0)")
    for sl in range(4):
        st = 56 + 2*sl
        A(f"""
        s_add_u32 s37, s10, {sl}
        s_and_b32 s37, s37, 3
        s_lshl_b32 s38, s13, 2
        s_add_u32 s37, s37, s38
        s_mul_i32 s37, s37, 56
        s_add_u32 s37, s37, s15
        s_lshl_b32 s37, s37, 11
        """)
        ob = 96 + 8*(sl & 1)
        for p in range(8):
            a0 = ACC + 16*sl + 2*p
            A(f"v_pk_fma_f32 v[{a0}:{a0+1}], v[{a0}:{a0+1}], v[{st}:{st+1}], v[{80+2*p}:{81+2*p}] op_sel:[0,0,0] op_sel_hi:[1,0,1]")
            A(f"v_pk_fma_f32 v[{a0}:{a0+1}], v[{64+2*p}:{65+2*p}], v[{st}:{st+1}], v[{a0}:{a0+1}] op_sel:[0,1,0] op_sel_hi:[1,1,1] neg_lo:[0,1,0] neg_hi:[0,1,0]")
            A(f"v_cvt_pk_bf16_f32 v{ob+p}, v{a0}, v{a0+1}")
            A(f"v_pk_max_i16 v{ob+p}, v{ob+p}, 0")
        A(f"buffer_store_dwordx4 v[{ob}:{ob+3}], v7, s[28:31], s37 offen")
        A(f"buffer_store_dwordx4 v[{ob+4}:{ob+7}], v7, s[28:31], s37 offen offset:1024")
    A("""
    """)
    A.endpgm(3)
    A("k3_done:\ns_endpgm")
    A.end_kernel(k, vgpr=256, sgpr=80)
    A.launch(k, (224,1,1), (256,1,1), lds=K3_LDS)

K4_P = 8192; K4_PW = 17408; K4_LDS = K4_P + 4*K4_PW
def k4(A):
    k = "k4_gemm2_kernel"; A.begin_kernel(k)
    A(f"""
    s_cmp_ge_u32 s2, 256
    s_cbranch_scc1 k4_done
    """)
    A.prof_begin()
    A(f"""
    s_load_dwordx2 s[8:9], s[0:1], 104     ; ws
    s_load_dwordx2 s[4:5], s[0:1], 88      ; out
    v_lshrrev_b32 v1, 6, v0
    v_and_b32 v2, 63, v0                   ; lane
    v_readfirstlane_b32 s10, v1            ; wave
    s_and_b32 s11, s2, 7                   ; x
    s_lshr_b32 s12, s2, 3                  ; j
    s_lshl_b32 s13, s11, 2
    s_and_b32 s14, s12, 3
    s_add_u32 s13, s13, s14                ; rb64
    s_lshr_b32 s14, s12, 2                 ; cbk
    s_waitcnt lgkmcnt(0)
    s_mul_i32 s3, s13, {2*114688}
    s_mul_i32 s15, s10, {14*2048}
    s_add_u32 s3, s3, s15
    s_add_u32 s16, s8, {WS_HID}
    s_addc_u32 s17, s9, 0
    s_add_u32 s16, s16, s3
    s_addc_u32 s17, s17, 0
    s_mov_b32 s18, {114688 + 14*2048}
    s_mov_b32 s19, 0x20000
    ; W2F SRD
    s_mul_i32 s3, s14, 229376
    s_mul_i32 s15, s10, {14*4096}
    s_add_u32 s3, s3, s15
    s_add_u32 s20, s8, {WS_W2F}
    s_addc_u32 s21, s9, 0
    s_add_u32 s20, s20, s3
    s_addc_u32 s21, s21, 0
    s_mov_b32 s22, {14*4096}
    s_mov_b32 s23, 0x20000
    """)
    A.srd_from(24, 8, 2048*512*2, WS_X1T); A.srd_from(28, 4, SIZE['out']); A.srd_from(32, 8, 3072*4, WS_MOD)
    A("""
    v_lshrrev_b32 v3, 3, v2
    v_and_b32 v4, 7, v2
    v_lshlrev_b32 v3, 12, v3
    v_lshl_add_u32 v3, v4, 4, v3
    s_lshl_b32 s3, s13, 7
    v_add_u32 v3, s3, v3
    s_lshl_b32 s3, s14, 6
    s_lshl_b32 s15, s10, 4
    s_add_u32 s3, s3, s15
    s_lshl_b32 s3, s3, 12
    s_lshl_b32 s15, s10, 11                ; LDS: 16 w * 128
    s_mov_b32 m0, s15
    s_nop 0
    buffer_load_dwordx4 v3, s[24:27], s3 offen lds
    s_add_u32 s3, s3, 32768
    s_add_u32 m0, s15, 1024
    s_nop 0
    buffer_load_dwordx4 v3, s[24:27], s3 offen lds
    v_lshlrev_b32 v7, 4, v2                ; lane*16
    """)
    RING = 10; RB = 16
    ACC = 176
    def issue(kk):
        b = RB + 16*(kk % RING)
        A(f"s_mov_b32 s36, {(kk>>2)*4096}")
        A(f"buffer_load_dwordx4 v[{b}:{b+3}], v7, s[16:19], s36 offen offset:{(kk&3)*1024}")
        A(f"s_mov_b32 s37, {114688 + (kk>>2)*4096}")
        A(f"buffer_load_dwordx4 v[{b+4}:{b+7}], v7, s[16:19], s37 offen offset:{(kk&3)*1024}")
        A(f"s_mov_b32 s38, {(kk>>1)*4096}")
        A(f"buffer_load_dwordx4 v[{b+8}:{b+11}], v7, s[20:23], s38 offen offset:{((kk&1)*2)*1024}")
        A(f"buffer_load_dwordx4 v[{b+12}:{b+15}], v7, s[20:23], s38 offen offset:{((kk&1)*2+1)*1024}")
    for kk in range(RING): issue(kk)
    for kk in range(28):
        rem = min(28, kk + RING) - kk - 1
        A(f"s_waitcnt vmcnt({4*rem})")
        if kk == 0: A.prof_mark(0)
        if kk == 14: A.prof_mark(1)
        b = RB + 16*(kk % RING)
        for Nl in range(2):
            for Sl in range(2):
                acc = f"v[{ACC+16*(2*Nl+Sl)}:{ACC+16*(2*Nl+Sl)+15}]"
                c = acc if kk > 0 else "0"
                A(f"v_mfma_f32_32x32x16_bf16 {acc}, v[{b+8+4*Nl}:{b+11+4*Nl}], v[{b+4*Sl}:{b+4*Sl+3}], {c}")
        if kk + RING < 28: issue(kk + RING)
    A.prof_mark(2)
    A(f"""
    v_lshrrev_b32 v8, 4, v2                ; G
    v_lshlrev_b32 v9, 6, v8                ; G*64 bytes
    s_lshl_b32 s3, s14, 8
    s_add_u32 s3, s3, {5*2048}
    """)
    for i in range(4): A(f"buffer_load_dwordx4 v[{16+4*i}:{19+4*i}], v9, s[32:35], s3 offen offset:{16*i}")
    A(f"""
    v_and_b32 v10, 31, v2
    v_mul_u32_u24 v10, 272, v10
    v_lshrrev_b32 v11, 5, v2
    v_lshl_add_u32 v10, v11, 4, v10
    s_mul_i32 s3, s10, {K4_PW}
    s_add_u32 s3, s3, {K4_P}
    v_add_u32 v10, s3, v10
    """)
    for Nl in range(2):
        for Sl in range(2):
            for q in range(4):
                a0 = ACC + 16*(2*Nl+Sl) + 4*q
                A(f"ds_write_b128 v10, v[{a0}:{a0+3}] offset:{Sl*32*272 + Nl*128 + q*32}")
    A("""
    v_lshrrev_b32 v12, 2, v2
    v_and_b32 v12, 3, v12                  ; r
    v_lshl_add_u32 v12, v8, 4, v12         ; 16G + r
    v_lshlrev_b32 v12, 7, v12
    v_and_b32 v13, 3, v2
    v_lshl_add_u32 v12, v13, 3, v12
    s_lshl_b32 s3, s10, 5
    v_add_u32 v12, s3, v12
    s_waitcnt lgkmcnt(0)
    s_barrier
    """)
    A.prof_mark(3)
    for i in range(4): A(f"ds_read_b64_tr_b16 v[{32+2*i}:{33+2*i}], v12 offset:{512*i}")
    A(f"""
    v_and_b32 v13, 15, v2
    s_lshl_b32 s3, s10, 4
    v_add_u32 v13, s3, v13                 ; s
    v_mul_u32_u24 v14, 272, v13
    v_add_u32 v14, v14, v9
    """)
    for w in range(4):
        for i in range(4):
            A(f"ds_read_b128 v[{48+16*w+4*i}:{48+16*w+4*i+3}], v14 offset:{K4_P + w*K4_PW + 16*i}")
    A("""
    s_lshl_b32 s3, s13, 6
    v_add_u32 v13, s3, v13
    v_lshlrev_b32 v13, 10, v13
    v_lshl_add_u32 v13, v8, 5, v13
    s_lshl_b32 s3, s14, 7
    s_waitcnt vmcnt(0) lgkmcnt(0)
    """)
    for e in range(16):
        A(f"v_add_f32 v{48+e}, v{48+e}, v{64+e}\nv_add_f32 v{80+e}, v{80+e}, v{96+e}")
    for e in range(16):
        A(f"v_add_f32 v{48+e}, v{48+e}, v{80+e}")
    for e in range(16):
        x = 32 + (e >> 1)
        if e & 1: A(f"v_and_b32 v44, 0xffff0000, v{x}")
        else: A(f"v_lshlrev_b32 v44, 16, v{x}")
        A(f"v_fma_f32 v{48+e}, v{48+e}, v{16+e}, v44")
    for d in range(8): A(f"v_cvt_pk_bf16_f32 v{64+d}, v{48+2*d}, v{49+2*d}")
    A("""
    buffer_store_dwordx4 v[64:67], v13, s[28:31], s3 offen
    buffer_store_dwordx4 v[68:71], v13, s[28:31], s3 offen offset:16
    """)
    A.endpgm(4)
    A("k4_done:\ns_endpgm")
    A.end_kernel(k, vgpr=240, sgpr=80)
    A.launch(k, (256,1,1), (256,1,1), lds=K4_LDS)


G_C = 131072; G_CP = G_C + 1024; G_LDS = G_CP + 4096
def k34(A):
    k = "k34_ffn_kernel"; A.begin_kernel(k)
    A("""
    s_cmp_ge_u32 s2, 256
    s_cbranch_scc1 k34_done
    """)
    A.prof_begin()
    A(f"""
    s_load_dwordx2 s[8:9], s[0:1], 104     ; ws
    s_load_dwordx2 s[4:5], s[0:1], 88      ; out
    v_lshrrev_b32 v1, 6, v0
    v_and_b32 v2, 63, v0                   ; lane
    v_readfirstlane_b32 s10, v1            ; wave
    s_and_b32 s11, s2, 7                   ; x
    s_lshr_b32 s12, s2, 3                  ; j
    s_lshr_b32 s6, s11, 1                  ; rg
    s_lshl_b32 s13, s6, 2
    s_and_b32 s14, s12, 3
    s_add_u32 s13, s13, s14
    s_and_b32 s14, s11, 1
    s_mul_i32 s14, s14, 7
    s_lshr_b32 s15, s12, 2
    s_add_u32 s14, s14, s15                ; fb
    s_lshl_b32 s15, s14, 2
    s_add_u32 s15, s15, s10                ; F
    s_lshl_b32 s44, s6, 3
    s_and_b32 s45, s11, 1
    s_lshl_b32 s45, s45, 2
    s_add_u32 s44, s44, s45
    s_and_b32 s45, s12, 3
    s_add_u32 s44, s44, s45                ; rb64
    s_lshr_b32 s45, s12, 2                 ; cbk
    v_lshlrev_b32 v7, 4, v2                ; lane*16
    s_waitcnt lgkmcnt(0)
    ; W2F SRD s[48:51]
    s_mul_i32 s3, s45, 229376
    s_mul_i32 s7, s10, {14*4096}
    s_add_u32 s3, s3, s7
    s_add_u32 s48, s8, {WS_W2F}
    s_addc_u32 s49, s9, 0
    s_add_u32 s48, s48, s3
    s_addc_u32 s49, s49, 0
    s_mov_b32 s50, {14*4096}
    s_mov_b32 s51, 0x20000
    """)
    A.srd_from(16, 8, 2048*512*2, WS_X1T)
    A.srd_from(52, 8, 0x8000, WS_FLAGS); A.srd_from(56, 8, 2048*8, WS_ST2)
    def w2f_load(V, i):
        V.op(f"s_mov_b32 s60, {(i>>2)*4096}\nbuffer_load_dwordx4 a[{4*i}:{4*i+3}], v7, s[48:51], s60 offen offset:{(i&3)*1024}", "w2")
    A("""
    s_cmp_ge_u32 s12, 28
    s_cbranch_scc1 k34_stats
    """)
    V = Vm(A)
    A(f"""
    s_lshl_b32 s3, s15, 15
    s_add_u32 s20, s8, {WS_W1F}
    s_addc_u32 s21, s9, 0
    s_add_u32 s20, s20, s3
    s_addc_u32 s21, s21, 0
    s_mov_b32 s22, 32768
    s_mov_b32 s23, 0x20000
    v_lshrrev_b32 v5, 4, v2                ; row
    v_and_b32 v6, 15, v2                   ; p
    v_lshlrev_b32 v3, 2, v5
    v_xor_b32 v6, v6, v3
    v_lshlrev_b32 v6, 4, v6
    v_lshl_add_u32 v6, v5, 12, v6
    s_lshl_b32 s3, s13, 8
    v_add_u32 v6, s3, v6
    s_lshl_b32 s32, s10, 16
    s_lshl_b32 s33, s10, 12
    """)
    WR = 64
    def chunk_ops(c):
        ops = []
        for i in range(4):
            ops.append(lambda i=i: V.op(f"s_add_u32 s34, s32, {(64*c+4*i)*4096}\ns_add_u32 m0, s33, {(64*c+4*i)*256}\ns_nop 0\nbuffer_load_dwordx4 v6, s[16:19], s34 offen lds", f"c{c}"))
            kk = 4*c+i
            ops.append(lambda i=i, kk=kk: V.op(f"s_mov_b32 s35, {c*4096}\nbuffer_load_dwordx4 v[{WR+4*kk}:{WR+4*kk+3}], v7, s[20:23], s35 offen offset:{i*1024}", f"c{c}"))
        return ops
    for o in chunk_ops(0): o()
    A.srd_from(24, 8, 16*2*1792*4, WS_C12P)
    A("""
    v_lshrrev_b32 v3, 5, v2
    v_mul_u32_u24 v3, 7168, v3
    v_and_b32 v4, 31, v2
    v_lshl_add_u32 v3, v4, 4, v3
    s_lshl_b32 s3, s14, 9
    s_mul_i32 s7, s10, 57344
    s_add_u32 s3, s3, s7
    """)
    for o in chunk_ops(1): o()
    for i in range(4):
        V.op(f"buffer_load_dwordx4 v[{192+4*i}:{195+4*i}], v3, s[24:27], s3 offen", "c12")
        if i < 3: A("s_add_u32 s3, s3, 14336")
    for o in chunk_ops(2): o()
    A.srd_from(28, 8, 2048*1792*2, WS_HID)
    A("""
    v_lshrrev_b32 v12, 4, v2               ; G
    v_lshrrev_b32 v13, 2, v2
    v_and_b32 v13, 3, v13                  ; r
    v_and_b32 v14, 3, v2                   ; c4
    v_lshrrev_b32 v15, 1, v12              ; G>>1
    v_lshl_add_u32 v15, v15, 3, v13        ; 8(G>>1)+r
    v_lshlrev_b32 v15, 8, v15              ; *256
    v_and_b32 v16, 1, v12
    v_lshlrev_b32 v16, 1, v16
    v_lshrrev_b32 v17, 1, v14
    v_add_u32 v16, v16, v17                ; low2
    v_lshl_add_u32 v15, v16, 4, v15
    v_and_b32 v17, 1, v14
    v_lshl_add_u32 v15, v17, 3, v15
    """)
    for sl in range(4):
        A(f"v_xor_b32 v17, {sl}, v13\nv_lshl_add_u32 v{8+sl}, v17, 6, v15")
    A("""
    s_and_b32 s3, s13, 3
    s_lshl_b32 s3, s3, 1
    s_lshl_b32 s7, s6, 3
    s_add_u32 s3, s3, s7
    s_add_u32 s3, s3, 224
    s_lshl_b32 s63, s3, 7
    v_and_b32 v50, 1, v2
    v_lshlrev_b32 v50, 7, v50
    v_and_b32 v52, 31, v2
    v_lshlrev_b32 v52, 3, v52
    s_lshl_b32 s62, s13, 10
    """)
    ACC = 192; BB = 16
    def rdB1(kap, sl):
        b = BB + 16*(kap & 1); off = 4096*(kap & 15)
        A(f"ds_read_b64_tr_b16 v[{b+4*sl}:{b+4*sl+1}], v{8+sl} offset:{off}")
        A(f"ds_read_b64_tr_b16 v[{b+4*sl+2}:{b+4*sl+3}], v{8+sl} offset:{off+1024}")
    w2n = [0]
    def w2op():
        i = w2n[0]; w2n[0] += 1
        return lambda: w2f_load(V, i)
    V.wait("c0"); A.prof_mark(0)
    A("s_barrier")
    for sl in range(4): rdB1(0, sl)
    pending = []
    def chunk_wait(c):
        if c == 1:
            V.wait("c12", "c1")
            for e in range(4):
                A(f"v_add_f32 v{48+e}, v{192+e}, v{196+e}\nv_add_f32 v{52+e}, v{200+e}, v{204+e}\nv_add_f32 v{48+e}, v{48+e}, v{52+e}") if False else None
        V.wait(f"c{c}")
        if c == 2: A("s_waitcnt lgkmcnt(0)")
        A("s_barrier")
        if os.environ.get("CHMARK"): A.prof_mark(3 + c)
        if c == 3:
            A(f"""
            s_cmp_lg_u32 s10, 0
            s_cbranch_scc1 k34_noc12
            v_add_u32 v3, {G_CP}, v7
            ds_read_b128 v[48:51], v3
            ds_read_b128 v[54:57], v3 offset:1024
            ds_read_b128 v[58:61], v3 offset:2048
            ds_read_b128 v[62:65], v3 offset:3072
            """.replace("v[62:65]", "v[196:199]") if False else f"""
            s_cmp_lg_u32 s10, 0
            s_cbranch_scc1 k34_noc12
            v_add_u32 v3, {G_CP}, v7
            ds_read_b128 v[0+56:0+59], v3
            """.replace("v[0+56:0+59]", "v[56:59]") + f"""
            ds_read_b128 v[60:63], v3 offset:1024
            s_waitcnt lgkmcnt(0)
            v_add_f32 v56, v56, v60
            v_add_f32 v57, v57, v61
            v_add_f32 v58, v58, v62
            v_add_f32 v59, v59, v63
            ds_read_b128 v[60:63], v3 offset:2048
            s_waitcnt lgkmcnt(0)
            v_add_f32 v56, v56, v60
            v_add_f32 v57, v57, v61
            v_add_f32 v58, v58, v62
            v_add_f32 v59, v59, v63
            ds_read_b128 v[60:63], v3 offset:3072
            s_waitcnt lgkmcnt(0)
            v_add_f32 v56, v56, v60
            v_add_f32 v57, v57, v61
            v_add_f32 v58, v58, v62
            v_add_f32 v59, v59, v63
            v_add_u32 v3, {G_C}, v7
            ds_write_b128 v3, v[56:59]
            s_waitcnt lgkmcnt(0)
k34_noc12:
            """)
    for kap in range(32):
        c = kap // 4
        if kap % 4 == 0:
            assert not pending
            if c + 3 <= 7: pending = chunk_ops(c + 3)
            else: pending = [w2op() for _ in range(8)]
            if c == 5: V.op("buffer_load_dword v51, v50, s[52:55], s63 offen sc1", "fs")
            if c == 6:
                V.wait("fs")
                A("v_cmp_ne_u32 vcc, 1, v51\ns_mov_b64 s[46:47], vcc")
                for sl in range(4):
                    V.op(f"buffer_load_dwordx2 v[{56+2*sl}:{57+2*sl}], v52, s[56:59], s62 offen offset:{256*sl} sc1", "st")
        nxt = kap + 1 < 32
        if nxt and (kap + 1) % 4 == 0: chunk_wait((kap+1)//4)
        if kap + 1 == 16:
            for sl in range(4): A(f"v_add_u32 v{8+sl}, 0x10000, v{8+sl}")
        b = BB + 16*(kap & 1)
        for sl in range(4):
            if nxt: A(f"s_waitcnt lgkmcnt(6)")
            else: A(f"s_waitcnt lgkmcnt({2*(3-sl)})")
            acc = f"v[{ACC+16*sl}:{ACC+16*sl+15}]"
            cc = acc if kap > 0 else "0"
            if kap == 0 and sl == 0:
                V.wait("c12")
                for e in range(4):
                    A(f"v_add_f32 v{56+e}, v{192+e}, v{196+e}\nv_add_f32 v{60+e}, v{200+e}, v{204+e}\nv_add_f32 v{56+e}, v{56+e}, v{60+e}")
                A(f"s_lshl_b32 s3, s10, 10\ns_add_u32 s3, s3, {G_CP}\nv_add_u32 v3, s3, v7\nds_write_b128 v3, v[56:59]\ns_waitcnt lgkmcnt(0)")
            A(f"v_mfma_f32_32x32x16_bf16 {acc}, v[{WR+4*kap}:{WR+4*kap+3}], v[{b+4*sl}:{b+4*sl+3}], {cc}")
            if nxt: rdB1(kap + 1, sl)
            if sl & 1 and pending: pending.pop(0)()
    assert not pending
    A.prof_mark(1)
    A("""
    s_cmp_eq_u64 s[46:47], 0
    s_cbranch_scc1 k34_stats_ok
    s_mov_b32 s61, 0
k34_pollS:
    buffer_load_dword v51, v50, s[52:55], s63 offen sc1
    s_waitcnt vmcnt(0)
    v_cmp_ne_u32 vcc, 1, v51
    s_cbranch_vccz k34_pollS_done
    s_add_u32 s61, s61, 1
    s_cmp_lt_u32 s61, 100000
    s_cbranch_scc1 k34_pollS
k34_pollS_done:
    """)
    for sl in range(4):
        A(f"buffer_load_dwordx2 v[{56+2*sl}:{57+2*sl}], v52, s[56:59], s62 offen offset:{256*sl} sc1")
    A("s_waitcnt vmcnt(0)\nk34_stats_ok:")
    A(f"""
    v_lshrrev_b32 v54, 5, v2
    v_lshlrev_b32 v54, 4, v54
    s_lshl_b32 s37, s10, 7
    s_add_u32 s37, s37, {G_C}
    v_add_u32 v54, s37, v54
    """)
    for q in range(4):
        A(f"ds_read_b128 v[{64+4*q}:{64+4*q+3}], v54 offset:{32*q}")
        A(f"ds_read_b128 v[{80+4*q}:{80+4*q+3}], v54 offset:{512+32*q}")
    V.wait("st", extra=" lgkmcnt(0)")
    A.prof_mark(2)
    for sl in range(4):
        st = 56 + 2*sl
        A(f"""
        s_lshl_b32 s38, s13, 2
        s_add_u32 s37, s38, {sl}
        s_mul_i32 s37, s37, 56
        s_add_u32 s37, s37, s15
        s_lshl_b32 s37, s37, 11
        """)
        ob = 96 + 8*sl
        for p in range(8):
            a0 = ACC + 16*sl + 2*p
            A(f"v_pk_fma_f32 v[{a0}:{a0+1}], v[{a0}:{a0+1}], v[{st}:{st+1}], v[{80+2*p}:{81+2*p}] op_sel:[0,0,0] op_sel_hi:[1,0,1]")
            A(f"v_pk_fma_f32 v[{a0}:{a0+1}], v[{64+2*p}:{65+2*p}], v[{st}:{st+1}], v[{a0}:{a0+1}] op_sel:[0,1,0] op_sel_hi:[1,1,1] neg_lo:[0,1,0] neg_hi:[0,1,0]")
            A(f"v_cvt_pk_bf16_f32 v{ob+p}, v{a0}, v{a0+1}")
            A(f"v_pk_max_i16 v{ob+p}, v{ob+p}, 0")
        V.op(f"buffer_store_dwordx4 v[{ob}:{ob+3}], v7, s[28:31], s37 offen sc1", "hs")
        V.op(f"buffer_store_dwordx4 v[{ob+4}:{ob+7}], v7, s[28:31], s37 offen offset:1024 sc1", "hs")
    A.prof_mark(3)
    while w2n[0] < 56: w2op()()
    V.wait("hs")
    A(f"""
    s_barrier
    s_cmp_lg_u32 s10, 0
    s_cbranch_scc1 k34_phaseB
    s_mul_i32 s3, s13, 14
    s_add_u32 s3, s3, s14
    s_lshl_b32 s3, s3, 7
    v_mov_b32 v3, 0
    v_mov_b32 v4, 1
    s_mov_b64 exec, 1
    buffer_store_dword v4, v3, s[52:55], s3 offen sc1
    s_mov_b64 exec, -1
    s_branch k34_phaseB
    """)
    A("k34_stats:")
    V = Vm(A)
    A("""
    s_and_b32 s3, s11, 1
    s_lshl_b32 s3, s3, 2
    s_add_u32 s3, s3, s12
    s_sub_u32 s3, s3, 28                   ; si
    s_lshl_b32 s7, s6, 3
    s_add_u32 s62, s7, s3
    v_lshrrev_b32 v3, 3, v2
    v_and_b32 v4, 7, v2                    ; rl
    v_lshlrev_b32 v5, 12, v3
    v_lshl_add_u32 v5, v4, 4, v5
    s_lshl_b32 s3, s62, 7
    v_add_u32 v5, s3, v5                   ; + R0*2
    s_lshl_b32 s34, s10, 19
    """)
    for i in range(16):
        V.op(f"buffer_load_dwordx4 v[{64+4*i}:{67+4*i}], v5, s[16:19], s34 offen", f"x{i}")
        if i < 15: A("s_add_u32 s34, s34, 32768")
    for e in range(16): A(f"v_mov_b32 v{16+e}, 0")
    for i in range(16):
        V.wait(f"x{i}")
        for d in range(4):
            A(f"v_lshlrev_b32 v{40+2*d}, 16, v{64+4*i+d}\nv_and_b32 v{41+2*d}, 0xffff0000, v{64+4*i+d}")
        for d in range(4):
            A(f"v_pk_add_f32 v[{16+2*d}:{17+2*d}], v[{16+2*d}:{17+2*d}], v[{40+2*d}:{41+2*d}]")
            A(f"v_pk_fma_f32 v[{24+2*d}:{25+2*d}], v[{40+2*d}:{41+2*d}], v[{40+2*d}:{41+2*d}], v[{24+2*d}:{25+2*d}]")
    A("""
    s_lshl_b32 s3, s10, 12
    v_lshlrev_b32 v5, 9, v3
    v_lshl_add_u32 v5, v4, 5, v5
    v_add_u32 v5, s3, v5
    ds_write_b128 v5, v[16:19]
    ds_write_b128 v5, v[20:23] offset:16
    ds_write_b128 v5, v[24:27] offset:256
    ds_write_b128 v5, v[28:31] offset:272
    s_waitcnt lgkmcnt(0)
    s_barrier
    s_cmp_ge_u32 s10, 2
    s_cbranch_scc1 k34_stats_wait
    s_lshl_b32 s3, s10, 8
    v_lshlrev_b32 v5, 2, v2
    v_add_u32 v5, s3, v5
    """)
    for g in range(32): A(f"ds_read_b32 v{64+g}, v5 offset:{g*512}")
    A("s_waitcnt lgkmcnt(0)")
    for st_ in (16, 8, 4, 2, 1):
        for e in range(st_): A(f"v_add_f32 v{64+e}, v{64+e}, v{64+st_+e}")
    A("""
    v_lshlrev_b32 v5, 2, v2
    s_cmp_eq_u32 s10, 0
    s_cbranch_scc1 k34_stats_w0
    ds_write_b32 v5, v64 offset:16384
    s_waitcnt lgkmcnt(0)
k34_stats_w0:
k34_stats_wait:
    s_barrier
    s_cmp_lg_u32 s10, 0
    s_cbranch_scc1 k34_stats_end
    ds_read_b32 v65, v5 offset:16384
    s_waitcnt lgkmcnt(0)
    v_mul_f32 v64, 0x3b000000, v64
    v_mul_f32 v65, 0x3b000000, v65
    v_fma_f32 v65, -v64, v64, v65
    v_max_f32 v65, 0, v65
    v_add_f32 v65, 0x3727c5ac, v65
    v_rsq_f32 v66, v65
    s_nop 0
    v_mul_f32 v67, v64, v66
    v_lshlrev_b32 v5, 3, v2
    s_lshl_b32 s3, s62, 9
    buffer_store_dwordx2 v[66:67], v5, s[56:59], s3 offen sc1
    s_waitcnt vmcnt(0)
    s_add_u32 s3, s62, 224
    s_lshl_b32 s3, s3, 7
    v_mov_b32 v3, 0
    v_mov_b32 v4, 1
    s_mov_b64 exec, 1
    buffer_store_dword v4, v3, s[52:55], s3 offen sc1
    s_mov_b64 exec, -1
k34_stats_end:
    """)
    V.done = len(V.ops)
    for i in range(56): w2f_load(V, i)
    A("""
    s_waitcnt vmcnt(0)
    s_barrier
    """)
    A("k34_phaseB:")
    if not os.environ.get("CHMARK"): A.prof_mark(4)
    V = Vm(A)
    A(f"""
    s_mul_i32 s3, s44, {2*114688}
    s_mul_i32 s7, s10, {14*2048}
    s_add_u32 s3, s3, s7
    s_add_u32 s16, s8, {WS_HID}
    s_addc_u32 s17, s9, 0
    s_add_u32 s16, s16, s3
    s_addc_u32 s17, s17, 0
    s_mov_b32 s18, {114688 + 14*2048}
    s_mov_b32 s19, 0x20000
    """)
    A.srd_from(24, 8, 2048*512*2, WS_X1T); A.srd_from(28, 4, SIZE['out']); A.srd_from(32, 8, 3072*4, WS_MOD)
    A("""
    v_lshrrev_b32 v3, 3, v2
    v_and_b32 v4, 7, v2
    v_lshlrev_b32 v3, 12, v3
    v_lshl_add_u32 v3, v4, 4, v3
    s_lshl_b32 s3, s44, 7
    v_add_u32 v3, s3, v3
    s_lshl_b32 s3, s45, 6
    s_lshl_b32 s7, s10, 4
    s_add_u32 s3, s3, s7
    s_lshl_b32 s3, s3, 12
    s_lshl_b32 s7, s10, 11                 ; LDS: 16 w * 128
    s_mov_b32 m0, s7
    """)
    V.op("s_nop 0\nbuffer_load_dwordx4 v3, s[24:27], s3 offen lds", "x1")
    V.op("s_add_u32 s3, s3, 32768\ns_add_u32 m0, s7, 1024\ns_nop 0\nbuffer_load_dwordx4 v3, s[24:27], s3 offen lds", "x1")
    A(f"""
    v_lshrrev_b32 v8, 4, v2                ; G
    v_lshlrev_b32 v9, 6, v8                ; G*64 bytes
    s_lshl_b32 s3, s45, 8
    s_add_u32 s3, s3, {5*2048}
    """)
    for i in range(4): V.op(f"buffer_load_dwordx4 v[{16+4*i}:{19+4*i}], v9, s[32:35], s3 offen offset:{16*i}", "gb")
    A(f"""
    s_mul_i32 s3, s10, 14
    s_lshr_b32 s3, s3, 2
    s_lshr_b32 s7, s44, 1
    s_mul_i32 s7, s7, 14
    s_add_u32 s3, s3, s7
    s_lshl_b32 s3, s3, 7
    v_and_b32 v3, 3, v2
    v_lshlrev_b32 v3, 7, v3
    s_mov_b32 s61, 0
k34_pollH:
    buffer_load_dword v4, v3, s[52:55], s3 offen sc1
    s_waitcnt vmcnt(0)
    v_cmp_ne_u32 vcc, 1, v4
    s_cbranch_vccz k34_pollH_done
    s_add_u32 s61, s61, 1
    s_cmp_lt_u32 s61, 100000
    s_cbranch_scc1 k34_pollH
k34_pollH_done:
    """)
    V.done = len(V.ops)
    (None if os.environ.get('CHMARK') else A.prof_mark(5))
    RING = 16; RB = 64; ACC = 192
    def hissue(kk):
        b = RB + 8*(kk % RING)
        V.op(f"s_mov_b32 s36, {(kk>>2)*4096}\nbuffer_load_dwordx4 v[{b}:{b+3}], v7, s[16:19], s36 offen offset:{(kk&3)*1024} sc1", f"h{kk}")
        V.op(f"s_mov_b32 s37, {114688 + (kk>>2)*4096}\nbuffer_load_dwordx4 v[{b+4}:{b+7}], v7, s[16:19], s37 offen offset:{(kk&3)*1024} sc1", f"h{kk}")
    PRE = 10
    def hops(kk):
        b = RB + 8*(kk % RING)
        return [lambda: V.op(f"s_mov_b32 s36, {(kk>>2)*4096}\nbuffer_load_dwordx4 v[{b}:{b+3}], v7, s[16:19], s36 offen offset:{(kk&3)*1024} sc1", f"h{kk}"),
                lambda: V.op(f"s_mov_b32 s37, {114688 + (kk>>2)*4096}\nbuffer_load_dwordx4 v[{b+4}:{b+7}], v7, s[16:19], s37 offen offset:{(kk&3)*1024} sc1", f"h{kk}")]
    for kk in range(PRE):
        for o in hops(kk): o()
    for kk in range(28):
        V.wait(f"h{kk}")
        if kk == 0: (None if os.environ.get('CHMARK') else A.prof_mark(6))
        b = RB + 8*(kk % RING)
        pend = hops(kk + PRE) if kk + PRE < 28 else []
        n = 0
        for Nl in range(2):
            for Sl in range(2):
                acc = f"v[{ACC+16*(2*Nl+Sl)}:{ACC+16*(2*Nl+Sl)+15}]"
                c = acc if kk > 0 else "0"
                i = kk*2 + Nl
                A(f"v_mfma_f32_32x32x16_bf16 {acc}, a[{4*i}:{4*i+3}], v[{b+4*Sl}:{b+4*Sl+3}], {c}")
                if n in (0, 2) and pend: pend.pop(0)()
                n += 1
    (None if os.environ.get('CHMARK') else A.prof_mark(7))
    A(f"""
    v_and_b32 v10, 31, v2
    v_mul_u32_u24 v10, 272, v10
    v_lshrrev_b32 v11, 5, v2
    v_lshl_add_u32 v10, v11, 4, v10
    s_mul_i32 s3, s10, {K4_PW}
    s_add_u32 s3, s3, {K4_P}
    v_add_u32 v10, s3, v10
    """)
    for Nl in range(2):
        for Sl in range(2):
            for q in range(4):
                a0 = ACC + 16*(2*Nl+Sl) + 4*q
                A(f"ds_write_b128 v10, v[{a0}:{a0+3}] offset:{Sl*32*272 + Nl*128 + q*32}")
    A("""
    v_lshrrev_b32 v12, 2, v2
    v_and_b32 v12, 3, v12                  ; r
    v_lshl_add_u32 v12, v8, 4, v12         ; 16G + r
    v_lshlrev_b32 v12, 7, v12
    v_and_b32 v13, 3, v2
    v_lshl_add_u32 v12, v13, 3, v12
    s_lshl_b32 s3, s10, 5
    v_add_u32 v12, s3, v12
    s_waitcnt lgkmcnt(0)
    s_barrier
    """)
    (None if os.environ.get('CHMARK') else A.prof_mark(8))
    for i in range(4): A(f"ds_read_b64_tr_b16 v[{32+2*i}:{33+2*i}], v12 offset:{512*i}")
    A(f"""
    v_and_b32 v13, 15, v2
    s_lshl_b32 s3, s10, 4
    v_add_u32 v13, s3, v13                 ; s
    v_mul_u32_u24 v14, 272, v13
    v_add_u32 v14, v14, v9
    """)
    for w in range(4):
        for i in range(4):
            A(f"ds_read_b128 v[{48+16*w+4*i}:{48+16*w+4*i+3}], v14 offset:{K4_P + w*K4_PW + 16*i}")
    A("""
    s_lshl_b32 s3, s44, 6
    v_add_u32 v13, s3, v13
    v_lshlrev_b32 v13, 10, v13
    v_lshl_add_u32 v13, v8, 5, v13
    s_lshl_b32 s3, s45, 7
    s_waitcnt lgkmcnt(0)
    """)
    for e in range(16):
        A(f"v_add_f32 v{48+e}, v{48+e}, v{64+e}\nv_add_f32 v{80+e}, v{80+e}, v{96+e}")
    for e in range(16):
        A(f"v_add_f32 v{48+e}, v{48+e}, v{80+e}")
    for e in range(16):
        x = 32 + (e >> 1)
        if e & 1: A(f"v_and_b32 v44, 0xffff0000, v{x}")
        else: A(f"v_lshlrev_b32 v44, 16, v{x}")
        A(f"v_fma_f32 v{48+e}, v{48+e}, v{16+e}, v44")
    for d in range(8): A(f"v_cvt_pk_bf16_f32 v{64+d}, v{48+2*d}, v{49+2*d}")
    A("""
    buffer_store_dwordx4 v[64:67], v13, s[28:31], s3 offen
    buffer_store_dwordx4 v[68:71], v13, s[28:31], s3 offen offset:16
    """)
    A.endpgm(3, nmarks=11)
    A("k34_done:\ns_endpgm")
    A.end_kernel(k, vgpr=512, sgpr=80, accum=256)
    A.launch(k, (256,1,1), (256,1,1), lds=G_LDS)

if __name__ == "__main__":
    A = Asm()
    A.prof = bool(int(os.environ.get("PROF", "0")))
    which = sys.argv[2].split(",") if len(sys.argv) > 2 else ["k1"]
    for w in which:
        if w.startswith("+"):
            nm = [l for l in A.launches if l[0].startswith(w[1:])][0]
            A.launches.append(nm)
        else: globals()[w](A)
    open(sys.argv[1], "w").write(A.text())
```

```python
import re
KN = "adaLN_cond__ssm_conv_h3__dense_activation_relu__prompt"

HEADER = """; Kernarg layout for this problem (112 bytes, ptrs only, base s[0:1]):
"""
ARG = dict(q=0, k=8, v=16, shift=24, ssmk=32, ssmD=40, bx=48, w1=56, w2=64, c=72, wmod=80, out=88, dbg=96, ws=104)
SIZE = dict(q=2048*512*2, k=2048*512*2, v=2048*512*2, shift=512*4*2, ssmk=512*2048*2, ssmD=512*2, w1=512*1792*2,
            w2=1792*512*2, c=512*2, wmod=512*3072*2, out=2048*512*2, dbg=256, ws=268435456)

TRANS = ("v_exp_f32","v_log_f32","v_rcp_f32","v_rsq_f32","v_sqrt_f32","v_sin_f32","v_cos_f32","v_rcp_iflag_f32",
         "v_exp_f16","v_log_f16","v_rcp_f16","v_rsq_f16","v_sqrt_f16")

def regs_of(op):
    op = op.strip()
    neg = op.lstrip("-")
    if neg.startswith("abs(") or neg.startswith("|"): neg = neg.strip("abs()|")
    op = neg
    m = re.fullmatch(r"([vsa])(\d+)", op)
    if m: return {(m.group(1), int(m.group(2)))}
    m = re.fullmatch(r"([vsa])\[(\d+):(\d+)\]", op)
    if m: return {(m.group(1), i) for i in range(int(m.group(2)), int(m.group(3)) + 1)}
    if op in ("vcc",): return {("s", 106), ("s", 107)}
    if op == "vcc_lo": return {("s", 106)}
    if op == "vcc_hi": return {("s", 107)}
    if op == "exec": return {("s", 126), ("s", 127)}
    if op == "m0": return {("s", 124)}
    return set()

class Ins:
    def __init__(self, text):
        self.text = text
        t = text.split(";")[0].strip()
        self.label = t.endswith(":")
        self.dir = t.startswith(".")
        if self.label or self.dir or not t:
            self.mn = None; return
        parts = t.split(None, 1)
        self.mn = parts[0]
        rest = parts[1] if len(parts) > 1 else ""
        ops = []; depth = 0; cur = ""
        for ch in rest:
            if ch == "[": depth += 1
            if ch == "]": depth -= 1
            if ch == "," and depth == 0: ops.append(cur.strip()); cur = ""
            else: cur += ch
        if cur.strip(): ops.append(cur.strip())
        mods = ""
        if ops:
            sp = ops[-1].split(None, 1)
            if len(sp) > 1: ops[-1] = sp[0]; mods = sp[1]
        self.ops = ops; self.mods = mods
        mn = self.mn
        self.is_mfma = mn.startswith("v_mfma") or mn.startswith("v_smfmac")
        self.is_valu = mn.startswith("v_") and not self.is_mfma
        self.is_salu = mn.startswith("s_")
        self.is_vmem = mn.startswith("buffer_") or mn.startswith("global_") or mn.startswith("flat_")
        self.is_ds = mn.startswith("ds_")
        self.is_trans = any(mn.startswith(x) for x in TRANS)
        self.is_dpp = bool(re.search(r"(row_shr|row_shl|row_ror|row_bcast|wave_sh|wave_ro|quad_perm|row_mirror|row_half_mirror|row_newbcast|row_share)", mods)) or mn.endswith("_dpp")
        self.is_permlane = mn.startswith("v_permlane")
        self.is_readlane = mn.startswith("v_readlane") or mn.startswith("v_readfirstlane") or mn.startswith("v_writelane")
        w = set(); r = set()
        R = [regs_of(o) for o in ops]
        if self.is_mfma:
            w = R[0]; self.srcA = R[1]; self.srcB = R[2]; self.srcC = R[3]; r = R[1] | R[2] | R[3]
            self.passes = 8 if "32x32" in mn else 4
            if "32x32x64" in mn or "16x16x128" in mn: self.passes *= 2
            if "4x4x4" in mn: self.passes = 2
            if "f32_32x32x2_f32" in mn: self.passes = 16
            if "f32_16x16x4_f32" in mn: self.passes = 8
        elif self.is_valu:
            if mn.startswith("v_cmpx"):
                w = R[0] | regs_of("exec"); r = set().union(*R[1:])
            elif mn.startswith("v_cmp"):
                w = R[0]; r = set().union(*R[1:])
            elif mn.startswith("v_permlane32_swap") or mn.startswith("v_permlane16_swap"):
                w = R[0] | R[1]; r = R[0] | R[1]
            elif re.match(r"v_(add|sub|subrev)_co_u32", mn):
                w = R[0] | R[1]; r = set().union(*R[2:])
            elif re.match(r"v_(addc|subb|subbrev)_co_u32", mn):
                w = R[0] | R[1]; r = set().union(*R[2:])
            elif mn.startswith("v_nop"):
                pass
            else:
                w = R[0]; r = set().union(*R[1:]) if len(R) > 1 else set()
                if mn.startswith("v_fmac") or mn.startswith("v_dot2c") or mn.startswith("v_mac") or mn.startswith("v_pk_fmac") or mn.startswith("v_writelane") or self.is_dpp or "sdwa" in mn or mn.startswith("v_cvt_sr") or mn.startswith("v_fmamk") :
                    r |= R[0]
                if mn.startswith("v_cndmask") and len(ops) == 3: r |= regs_of("vcc")
                if mn.startswith("v_div_fmas"): r |= regs_of("vcc")
        elif self.is_vmem:
            if "load" in mn and " lds" not in (" " + mods) and not mn.startswith("global_load_lds"):
                w = R[0]; r = set().union(*R[1:])
            elif "atomic" in mn and "sc0" in mods:
                w = R[0]; r = set().union(*R)
            else:
                r = set().union(*R) if R else set()
            if " lds" in (" " + mods) or mn.startswith("global_load_lds"): r |= regs_of("m0")
            self.wide_store = ("store" in mn) and (mn.endswith("x4") or mn.endswith("x3"))
            self.store_data = set()
            if "store" in mn:
                self.store_data = R[0] if mn.startswith("buffer_") else R[1]
        elif self.is_ds:
            if mn.startswith("ds_read") or mn.startswith("ds_bpermute") or mn.startswith("ds_permute") or mn.startswith("ds_swizzle") or "_rtn" in mn:
                w = R[0]; r = set().union(*R[1:])
            else:
                r = set().union(*R)
        elif self.is_salu:
            if mn.startswith("s_cmp") or mn.startswith("s_cbranch") or mn.startswith("s_branch") or mn in ("s_waitcnt","s_barrier","s_nop","s_endpgm","s_sleep","s_setprio") or mn.startswith("s_bitcmp"):
                r = set().union(*R) if R else set()
            else:
                w = R[0] if R else set(); r = set().union(*R[1:]) if len(R) > 1 else set()
                if "saveexec" in mn: w = w | regs_of("exec"); r |= regs_of("exec")
        self.w = w; self.r = r
    def states(self):
        if self.mn == "s_nop": return int(self.ops[0], 0) + 1
        return 1

def isv(S): return {x for x in S if x[0] in "va"}
def iss(S): return {x for x in S if x[0] == "s"}

def need(p, c):
    n = 0
    if p.is_valu:
        pv = isv(p.w); ps = iss(p.w)
        if pv:
            if c.is_valu and c.is_dpp and (pv & c.r): n = max(n, 2)
            if c.is_valu and c.is_readlane and (pv & c.r) and not c.mn.startswith("v_writelane"): n = max(n, 1)
            if c.is_valu and c.is_permlane and (pv & c.r): n = max(n, 2)
            if c.is_mfma and (pv & c.r): n = max(n, 2)
            if p.is_trans and c.is_valu and not c.is_trans and (pv & c.r): n = max(n, 1)
            if p.is_trans and (c.is_mfma or c.is_vmem or c.is_ds) and (pv & c.r): n = max(n, 1)
        if ps:
            if c.is_vmem and (ps & c.r): n = max(n, 5)
            if c.is_valu and (ps & c.r): n = max(n, 4 if c.is_readlane else 2)
            if c.is_salu and (ps & c.r): n = max(n, 4)
            if c.is_mfma and (ps & regs_of("exec")): n = max(n, 4)
            if (ps & regs_of("exec")) and c.is_valu and c.is_dpp: n = max(n, 5)
            if (ps & regs_of("exec")) and c.is_valu and (c.is_readlane or c.is_permlane): n = max(n, 4)
    if p.is_mfma:
        D = p.w
        big = {2: 5, 4: 8, 8: 12, 16: 20}[p.passes]
        if c.is_mfma:
            if D & (c.srcA | c.srcB): n = max(n, big)
            if D & c.srcC:
                if not (c.srcC == D and c.passes == p.passes): n = max(n, {2: 4, 4: 6, 8: 10, 16: 18}[p.passes])
                elif p.passes == 2: n = max(n, 2)
            elif D & c.w: n = max(n, {2: 4, 4: 6, 8: 10, 16: 18}[p.passes])
        elif c.is_valu or c.is_vmem or c.is_ds:
            if D & (c.r | c.w): n = max(n, big)
        if c.is_valu and (p.srcC & c.w): n = max(n, {2: 1, 4: 3, 8: 7, 16: 15}[p.passes])
    if p.is_vmem and getattr(p, "wide_store", False):
        if (c.is_valu or c.is_mfma) and (p.store_data & c.w): n = max(n, 2)
        elif (p.store_data & c.w): n = max(n, 1)
    if p.is_salu and (regs_of("m0") & p.w):
        if (c.is_vmem and (regs_of("m0") & c.r)): n = max(n, 1)
    return n

def pad_hazards(lines, window=24):
    out = []; hist = []
    npad = 0
    for text in lines:
        ins = Ins(text)
        if ins.mn is None:
            out.append(text); continue
        req = 0
        dist = 0
        for p in reversed(hist):
            k = need(p, ins)
            if k > dist: req = max(req, k - dist)
            dist += p.states()
            if dist > window: break
        while req > 0:
            k = min(req, 16)
            nop = Ins(f"s_nop {k-1}")
            out.append(f"    s_nop {k-1}"); hist.append(nop); req -= k; npad += 1
        out.append(text); hist.append(ins)
        if len(hist) > 64: hist = hist[-40:]
    return out, npad

class Asm:
    def __init__(self):
        self.lines = []
        self.kernels = []
        self.launches = []
        self.uid = 0
    def __call__(self, s=""):
        for l in s.split("\n"):
            l = l.strip()
            if not l or l.startswith(";"): continue
            m = re.search(r"offset:(-?\d+|0x[0-9a-fA-F]+)", l)
            if m:
                o = int(m.group(1), 0)
                if l.startswith("buffer_"): assert 0 <= o < 4096, l
                elif l.startswith("global_"): assert -4096 <= o < 4096, l
                elif l.startswith("ds_"): assert 0 <= o < 65536, l
            m = re.search(r"offset[01]:(\d+)", l)
            if m: assert int(m.group(1)) < 256, l
            self.lines.append(l if l.split(";")[0].strip().endswith(":") else "    " + l)
    def label(self, base="L"):
        self.uid += 1
        return f"{base}_{self.uid}"
    def begin_kernel(self, name):
        self.kstart = len(self.lines)
        self.lines.append(f".globl {name}")
        self.lines.append(".p2align 8")
        self.lines.append(f".type {name},@function")
        self.lines.append(f"{name}:")
    def end_kernel(self, name, vgpr=256, sgpr=102, accum=None, wgid_y=False):
        if self.prof: sgpr = 102
        mv = ms = ma = -1
        for l in self.lines[self.kstart:]:
            ins = Ins(l)
            if ins.mn is None: continue
            for o in ins.ops:
                for (t, n) in regs_of(o):
                    if t == "v": mv = max(mv, n)
                    if t == "a": ma = max(ma, n)
                    if t == "s" and n < 102: ms = max(ms, n)
        if accum is None: accum = min(256, (vgpr + 3) // 4 * 4)
        assert mv < accum and mv < vgpr, (name, "vgpr", mv, vgpr, accum)
        assert ma < 0 or accum + ma < vgpr, (name, "agpr", ma, accum, vgpr)
        assert ms < sgpr, (name, "sgpr", ms, sgpr)
        self.kernels.append((name, vgpr, sgpr, accum, wgid_y))
    def launch(self, name, grid, block, lds=0):
        self.launches.append((name, grid, block, lds))
    def text(self, single=False, pad=True):
        h = HEADER
        if single:
            name, g, b, lds = self.launches[0]
            h += f"; @launch grid=({g[0]},{g[1]},{g[2]}) block=({b[0]},{b[1]},{b[2]}) lds={lds}\n"
        else:
            for name, g, b, lds in self.launches:
                h += f"; @launch kernel={name} grid=({g[0]},{g[1]},{g[2]}) block=({b[0]},{b[1]},{b[2]}) lds={lds}\n"
        h += '.amdgcn_target "amdgcn-amd-amdhsa--gfx950"\n.text\n'
        lines = self.lines
        if pad:
            lines, n = pad_hazards(lines)
        h += "\n".join(lines) + "\n"
        h += '.section .rodata,"a"\n'
        for name, vgpr, sgpr, accum, wy in self.kernels:
            h += f".p2align 6\n.amdhsa_kernel {name}\n  .amdhsa_next_free_vgpr {vgpr}\n  .amdhsa_next_free_sgpr {sgpr}\n"
            h += f"  .amdhsa_accum_offset {accum}\n  .amdhsa_group_segment_fixed_size 0\n  .amdhsa_kernarg_size 112\n"
            h += "  .amdhsa_user_sgpr_count 2\n  .amdhsa_user_sgpr_kernarg_segment_ptr 1\n  .amdhsa_system_sgpr_workgroup_id_x 1\n"
            if wy: h += "  .amdhsa_system_sgpr_workgroup_id_y 1\n"
            h += "  .amdhsa_float_denorm_mode_32 3\n"
            h += ".end_amdhsa_kernel\n"
        return h

    def srd(self, s, arg, size=None, off=0):
        if size is None: size = SIZE[arg] - off
        self(f"s_load_dwordx2 s[{s}:{s+1}], s[0:1], {ARG[arg]}")
        self("s_waitcnt lgkmcnt(0)")
        if off:
            self(f"s_add_u32 s{s}, s{s}, {off}")
            self(f"s_addc_u32 s{s+1}, s{s+1}, 0")
        self(f"s_mov_b32 s{s+2}, {size}")
        self(f"s_mov_b32 s{s+3}, 0x20000")
    def srd_from(self, s, pair, size, off=0):
        if off:
            self(f"s_add_u32 s{s}, s{pair}, {off}")
            self(f"s_addc_u32 s{s+1}, s{pair+1}, 0")
        else:
            if s != pair:
                self(f"s_mov_b32 s{s}, s{pair}")
                self(f"s_mov_b32 s{s+1}, s{pair+1}")
        self(f"s_mov_b32 s{s+2}, {size}")
        self(f"s_mov_b32 s{s+3}, 0x20000")
    def code_prefetch(self, start_label, end_label, sreg, vtmp, vdst, nbytes_max, wave_sgpr=None):
        h = self.label("cp")
        self(f"s_getpc_b64 s[{sreg}:{sreg+1}]")
        self(f"{h}:")
        self(f"s_add_u32 s{sreg}, s{sreg}, {start_label}-{h}")
        self(f"s_addc_u32 s{sreg+1}, s{sreg+1}, 0")
        self(f"s_mov_b32 s{sreg+2}, {end_label}-{start_label}")
        self(f"s_mov_b32 s{sreg+3}, 0x20000")
        self(f"v_mbcnt_lo_u32_b32 {vtmp}, -1, 0")
        self(f"v_mbcnt_hi_u32_b32 {vtmp}, -1, {vtmp}")
        self(f"v_lshlrev_b32 {vtmp}, 7, {vtmp}")
        n = (nbytes_max + 8191) // 8192
        for i in range(n):
            if i == 0: self(f"buffer_load_dword {vdst}, {vtmp}, s[{sreg}:{sreg+3}], 0 offen")
            else:
                self(f"v_add_u32 {vtmp}, 0x2000, {vtmp}")
                self(f"buffer_load_dword {vdst}, {vtmp}, s[{sreg}:{sreg+3}], 0 offen")
        return n
    prof = False
    def prof_begin(self):
        if not self.prof: return
        self("s_memrealtime s[92:93]")
        self("s_memtime s[82:83]")
    def mreg(self, n):
        return 84 + 2*n if n < 4 else 64 + 2*(n - 4)
    def prof_mark(self, n):
        if not self.prof: return
        r = self.mreg(n)
        self(f"s_memrealtime s[{r}:{r+1}]")
    def endpgm(self, kidx, nmarks=4):
        if self.prof:
            self("s_waitcnt vmcnt(0) lgkmcnt(0)")
            self("s_memrealtime s[94:95]")
            self("s_memtime s[80:81]")
            self("s_load_dwordx2 s[96:97], s[0:1], 104")
            self("s_waitcnt lgkmcnt(0)")
            self(f"s_add_u32 s96, s96, {0x2000000 + kidx*0x40000}")
            self("s_addc_u32 s97, s97, 0")
            self("s_mov_b32 s98, 0x40000")
            self("s_mov_b32 s99, 0x20000")
            self("s_mov_b64 exec, 1")
            self("v_lshrrev_b32 v1, 6, v0")
            self("s_lshl_b32 s3, s2, 3")
            self("v_add_u32 v1, s3, v1")
            self("v_lshlrev_b32 v1, 6, v1")
            self("s_sub_u32 s80, s80, s82")
            self("v_mov_b32 v4, s92"); self("v_mov_b32 v5, s94"); self("v_mov_b32 v6, s80"); self("v_mov_b32 v7, 0x12345678")
            self("buffer_store_dwordx4 v[4:7], v1, s[96:99], 0 offen")
            for g in range(3):
                for e in range(4):
                    n = 4*g + e
                    if n < nmarks: self(f"v_mov_b32 v{8+4*g+e}, s{self.mreg(n)}")
                    else: self(f"v_mov_b32 v{8+4*g+e}, 0")
                self(f"buffer_store_dwordx4 v[{8+4*g}:{11+4*g}], v1, s[96:99], 0 offen offset:{16+16*g}")
        self("s_endpgm")
    def rb(self, v, t=None):
        t = t or v
        self(f"v_cvt_pk_bf16_f32 {t}, {v}, {v}")
        self(f"v_lshlrev_b32 {v}, 16, {t}")


class Vm:
    def __init__(self, A):
        self.A = A; self.ops = []; self.done = 0
    def op(self, text, tag):
        self.A(text); self.ops.append(tag)
        out = len(self.ops) - self.done
        assert out <= 63, f"too many outstanding vm ops ({out}) at {text}"
    def wait(self, *tags, extra=""):
        last = max(i for i, t in enumerate(self.ops) if t in tags)
        n = len(self.ops) - 1 - last
        if last + 1 > self.done:
            self.A(f"s_waitcnt vmcnt({n}){extra}")
            self.done = last + 1
        elif extra: self.A(f"s_waitcnt{extra}")
    def clone(self):
        v = Vm(self.A); v.ops = list(self.ops); v.done = self.done; return v
    def wait_all(self, extra=""):
        self.A(f"s_waitcnt vmcnt(0){extra}"); self.done = len(self.ops)
```

```python
import sys, os
from asmlib import *

PREF = int(os.environ.get('PREF', '1'))
WS_KVT=0x000000; WS_QT=0x200000; WS_X1T=0x400000; WS_R1=0x600000; WS_MR1=0x602000
WS_MOD=0x610000; WS_FLAGS=0x680000; WS_ST2=0x690000; WS_MODP=0x604000; WS_C12P=0x620000; WS_W1F=0x700000; WS_W2F=0x900000; WS_HID=0xB00000

def dpp_wave_sum(A, regs):
    for ctrl in ("row_shr:1","row_shr:2","row_shr:4","row_shr:8"):
        for r in regs:
            A(f"v_add_f32_dpp {r}, {r}, {r} {ctrl} row_mask:0xf bank_mask:0xf bound_ctrl:0")
    for r in regs: A(f"v_add_f32_dpp {r}, {r}, {r} row_bcast:15 row_mask:0xa bank_mask:0xf")
    for r in regs: A(f"v_add_f32_dpp {r}, {r}, {r} row_bcast:31 row_mask:0xc bank_mask:0xf")

def k1(A):
    k = "k1_prep_kernel"; A.begin_kernel(k)
    A("""
    s_cmp_ge_u32 s2, 256
    s_cbranch_scc1 k1_done
    """)
    A.prof_begin()
    if PREF:
        A("s_cmp_ge_u32 s2, 8\ns_cbranch_scc1 k1_nopf")
        A.code_prefetch("k1_pf_start", "k1_done", 24, "v200", "v201", 8192)
        A.code_prefetch("k2_conv_kernel", "k34_done", 24, "v200", "v201", 49152)
        A("k1_nopf:\nk1_pf_start:")
    A("""
    s_load_dwordx8 s[4:11], s[0:1], 0      ; q k v shift
    s_load_dwordx2 s[12:13], s[0:1], 32    ; ssmk
    s_load_dwordx4 s[16:19], s[0:1], 72    ; c wmod
    s_load_dwordx2 s[20:21], s[0:1], 104   ; ws
    s_and_b32 s56, s2, 7                   ; x
    s_lshr_b32 s57, s2, 3                  ; j
    s_lshr_b32 s58, s57, 3
    s_lshl_b32 s59, s56, 2
    s_add_u32 s58, s58, s59                ; rb
    s_and_b32 s59, s57, 7                  ; cb
    s_lshl_b32 s60, s58, 6                 ; row0
    s_lshl_b32 s61, s59, 7
    v_and_b32 v1, 31, v0                   ; cp
    v_lshrrev_b32 v2, 5, v0                ; rg
    v_lshlrev_b32 v3, 3, v2
    v_add_u32 v3, s60, v3
    v_lshlrev_b32 v4, 10, v3
    v_lshl_add_u32 v4, v1, 2, v4
    v_add_u32 v4, s61, v4                  ; vbase
    v_subrev_u32 v5, 3072, v4              ; vbase - 3072
    s_lshl_b32 s62, s59, 9
    v_lshlrev_b32 v6, 4, v1
    v_add_u32 v6, s62, v6
    v_lshrrev_b32 v7, 6, v0                ; wave
    v_and_b32 v35, 63, v0                  ; lane
    s_lshl_b32 s63, s56, 8
    s_lshl_b32 s64, s57, 3
    s_add_u32 s63, s63, s64
    v_lshl_add_u32 v120, v7, 1, s63
    v_lshlrev_b32 v118, 2, v120
    v_lshlrev_b32 v120, 10, v120
    v_lshl_add_u32 v120, v35, 4, v120
    s_lshl_b32 s65, s2, 13
    v_lshlrev_b32 v119, 4, v0
    v_add_u32 v119, s65, v119
    s_and_b32 s71, s2, 3
    s_lshr_b32 s72, s2, 2
    s_lshl_b32 s73, s71, 7                 ; 128 kq
    v_lshlrev_b32 v121, 4, v2
    v_add_u32 v121, s73, v121
    s_movk_i32 s74, 6144
    v_mul_lo_u32 v121, v121, s74
    s_lshl_b32 s75, s72, 7
    v_lshl_add_u32 v121, v1, 2, v121
    v_add_u32 v121, s75, v121
    v_lshl_add_u32 v122, v7, 5, v1
    v_add_u32 v122, s73, v122
    v_lshlrev_b32 v122, 1, v122            ; c offset
    s_movk_i32 s66, 0x1000
    s_waitcnt lgkmcnt(0)
    """)
    A.srd_from(24, 4, SIZE['q']); A.srd_from(28, 6, SIZE['k']); A.srd_from(32, 8, SIZE['v']); A.srd_from(36, 10, SIZE['shift'])
    A("buffer_load_dwordx4 v[36:39], v6, s[36:39], 0 offen")
    for i in range(3): A(f"buffer_load_dword v{8+i}, v5, s[28:31], 0 offen offset:{i*1024}")
    for i in range(8):
        so = "0" if i < 4 else "s66"
        A(f"buffer_load_dword v{11+i}, v4, s[28:31], {so} offen offset:{(i%4)*1024}")
    for i in range(8):
        so = "0" if i < 4 else "s66"
        A(f"buffer_load_dword v{19+i}, v4, s[32:35], {so} offen offset:{(i%4)*1024}")
    A.srd_from(76, 16, SIZE['c'])
    A.srd_from(80 - 0, 18, SIZE['wmod']) if False else None
    A("""
    s_mov_b32 s40, s18
    s_mov_b32 s41, s19
    s_cmp_lt_u32 s2, 192
    s_cselect_b32 s42, %d, 0
    s_mov_b32 s43, 0x20000
    buffer_load_ushort v123, v122, s[76:79], 0 offen
    """ % SIZE['wmod'])
    for i in range(8):
        so = "0" if i < 4 else "s66"
        A(f"buffer_load_dword v{27+i}, v4, s[24:27], {so} offen offset:{(i%4)*1024}")
    A("buffer_load_dwordx4 v[40:43], v120, s[24:27], 0 offen")
    A("buffer_load_dwordx4 v[44:47], v120, s[24:27], 0 offen offset:1024")
    for i in range(16):
        if i == 0: A(f"buffer_load_dword v124, v121, s[40:43], 0 offen")
        else:
            A(f"s_mov_b32 s62, {i*6144}")
            A(f"buffer_load_dword v{124+i}, v121, s[40:43], s62 offen")
    A.srd_from(52, 12, SIZE['ssmk'])
    A("buffer_load_dwordx4 v[48:51], v119, s[52:55], 0 offen")
    A("buffer_load_dwordx4 v[52:55], v119, s[52:55], s66 offen")
    A.srd_from(12, 20, 2048*512*2, WS_KVT); A.srd_from(44, 20, 2048*512*2, WS_QT); A.srd_from(48, 20, 0x4000, WS_R1)
    A("""
    s_lshl_b32 s62, s59, 18
    v_lshlrev_b32 v6, 13, v1
    v_add_u32 v6, s62, v6
    v_lshl_add_u32 v6, v3, 1, v6
    s_mov_b32 s67, 0x05040100
    s_mov_b32 s68, 0x07060302
    """)
    A("s_waitcnt vmcnt(37)"); A.prof_mark(0)
    A("""
    v_lshlrev_b32 v94, 16, v36
    v_lshlrev_b32 v95, 16, v38
    v_and_b32 v96, 0xffff0000, v36
    v_and_b32 v97, 0xffff0000, v38
    v_lshlrev_b32 v98, 16, v37
    v_lshlrev_b32 v99, 16, v39
    v_and_b32 v100, 0xffff0000, v37
    v_and_b32 v101, 0xffff0000, v39
    """)
    for i in range(11):
        A(f"v_lshlrev_b32 v{56+2*i}, 16, v{8+i}\nv_and_b32 v{57+2*i}, 0xffff0000, v{8+i}")
    def P(r): return f"v[{r}:{r+1}]"
    for r in range(8):
        d = 102 + 2*r
        A(f"v_pk_mul_f32 {P(d)}, {P(56+2*(r+3))}, {P(94)}")
        A(f"v_pk_fma_f32 {P(d)}, {P(56+2*(r+2))}, {P(96)}, {P(d)}")
        A(f"v_pk_fma_f32 {P(d)}, {P(56+2*(r+1))}, {P(98)}, {P(d)}")
        A(f"v_pk_fma_f32 {P(d)}, {P(56+2*r)}, {P(100)}, {P(d)}")
    A("s_waitcnt vmcnt(29)"); A.prof_mark(1)
    for i in range(8):
        A(f"v_lshlrev_b32 v{78+2*i}, 16, v{19+i}\nv_and_b32 v{79+2*i}, 0xffff0000, v{19+i}")
    for r in range(8):
        A(f"v_pk_mul_f32 {P(102+2*r)}, {P(102+2*r)}, {P(78+2*r)}")
    for e in range(2):
        for d,(a_,b_) in enumerate(((3,2),(1,0),(7,6),(5,4))):
            A(f"v_cvt_pk_bf16_f32 v{56+4*e+d}, v{102+2*a_+e}, v{102+2*b_+e}")
    A("buffer_store_dwordx4 v[56:59], v6, s[12:15], 0 offen")
    A("buffer_store_dwordx4 v[60:63], v6, s[12:15], s66 offen")
    A("s_waitcnt vmcnt(30)")
    A("""
    v_lshlrev_b32 v123, 16, v123
    v_mul_f32 v8, 0xbfb8aa3b, v123
    v_exp_f32 v8, v8
    v_add_f32 v8, 1.0, v8
    v_rcp_f32 v8, v8
    v_mul_f32 v123, v123, v8
    v_cvt_pk_bf16_f32 v123, v123, v123
    v_lshlrev_b32 v123, 16, v123
    v_lshlrev_b32 v8, 7, v7                ; wave*128
    v_lshl_add_u32 v9, v1, 2, v8           ; + (lane&31)*4
    ds_write_b32 v9, v123
    v_lshrrev_b32 v10, 5, v35              ; half
    v_lshl_add_u32 v10, v10, 6, v8
    """)
    A("s_waitcnt vmcnt(22)")
    for e in range(2):
        sel = "s67" if e == 0 else "s68"
        for d in range(4):
            A(f"v_perm_b32 v{64+4*e+d}, v{27+2*d+1}, v{27+2*d}, {sel}")
    A("buffer_store_dwordx4 v[64:67], v6, s[44:47], 0 offen")
    A("buffer_store_dwordx4 v[68:71], v6, s[44:47], s66 offen")
    A("s_waitcnt lgkmcnt(0)")
    A("ds_read_b128 v[8:11], v10\nds_read_b128 v[12:15], v10 offset:16\nds_read_b128 v[16:19], v10 offset:32\nds_read_b128 v[20:23], v10 offset:48")
    A("s_waitcnt vmcnt(22)"); A.prof_mark(2)
    A("v_mov_b32 v72, 0\nv_mov_b32 v73, 0\nv_mov_b32 v74, 0\nv_mov_b32 v75, 0")
    A("s_mov_b32 s69, 0x3f803f80")
    for i in range(4):
        A(f"v_dot2c_f32_bf16 v72, s69, v{40+i}")
        A(f"v_dot2c_f32_bf16 v73, v{40+i}, v{40+i}")
        A(f"v_dot2c_f32_bf16 v74, s69, v{44+i}")
        A(f"v_dot2c_f32_bf16 v75, v{44+i}, v{44+i}")
    dpp_wave_sum(A, ["v72","v73","v74","v75"])
    A("""
    v_mul_f32 v72, 0x3b000000, v72
    v_mul_f32 v74, 0x3b000000, v74
    v_mul_f32 v73, 0x3b000000, v73
    v_mul_f32 v75, 0x3b000000, v75
    v_fma_f32 v73, -v72, v72, v73
    v_fma_f32 v75, -v74, v74, v75
    v_max_f32 v73, 0, v73
    v_max_f32 v75, 0, v75
    v_add_f32 v73, 0x3727c5ac, v73
    v_add_f32 v75, 0x3727c5ac, v75
    v_rsq_f32 v76, v73
    v_rsq_f32 v77, v75
    s_nop 0
    v_mul_f32 v78, v72, v76
    v_mul_f32 v79, v74, v77
    s_mov_b32 exec_lo, 0
    s_mov_b32 exec_hi, 0x80000000
    s_movk_i32 s70, 0x2000
    buffer_store_dwordx2 v[76:77], v118, s[48:51], 0 offen
    buffer_store_dwordx2 v[78:79], v118, s[48:51], s70 offen
    s_mov_b64 exec, -1
    s_cmp_ge_u32 s2, 192
    s_cbranch_scc1 k1_end
    """)
    A("v_mov_b32 v40, 0\nv_mov_b32 v41, 0\ns_waitcnt vmcnt(8) lgkmcnt(0)"); A.prof_mark(3)
    for i in range(16):
        A(f"v_lshlrev_b32 v42, 16, v{124+i}\nv_and_b32 v43, 0xffff0000, v{124+i}")
        A(f"v_fmac_f32 v40, v42, v{8+i}\nv_fmac_f32 v41, v43, v{8+i}")
    A("""
    v_mov_b32 v42, v40
    v_mov_b32 v43, v41
    v_permlane32_swap_b32 v40, v42
    v_permlane32_swap_b32 v41, v43
    v_add_f32 v40, v40, v42
    v_add_f32 v41, v41, v43
    v_lshlrev_b32 v5, 8, v7
    v_lshl_add_u32 v5, v1, 3, v5
    ds_write_b64 v5, v[40:41] offset:1024
    s_waitcnt lgkmcnt(0)
    s_barrier
    v_lshlrev_b32 v5, 2, v0
    v_cmp_gt_u32 vcc, 64, v0
    s_and_saveexec_b64 s[64:65], vcc
    s_cbranch_execz k1_end
    ds_read_b32 v8, v5 offset:1024
    ds_read_b32 v9, v5 offset:1280
    ds_read_b32 v10, v5 offset:1536
    ds_read_b32 v11, v5 offset:1792
    """)
    A.srd_from(32, 20, 4*3072*4, WS_MODP)
    A("""
    s_mul_i32 s59, s71, 12288
    s_lshl_b32 s61, s72, 8
    s_add_u32 s59, s59, s61
    s_waitcnt lgkmcnt(0)
    v_add_f32 v8, v8, v9
    v_add_f32 v10, v10, v11
    v_add_f32 v8, v8, v10
    buffer_store_dword v8, v5, s[32:35], s59 offen
k1_end:
    s_mov_b64 exec, -1
    """)
    A.srd_from(32, 20, 0x8000, WS_FLAGS)
    A("""
    v_mov_b32 v8, 0
    v_mov_b32 v9, 0
    v_mov_b32 v10, 0
    v_mov_b32 v11, 0
    v_lshlrev_b32 v5, 4, v0
    s_lshl_b32 s59, s2, 7
    v_cmp_gt_u32 vcc, 8, v0
    s_and_saveexec_b64 s[64:65], vcc
    s_cbranch_execz k1_end2
    buffer_store_dwordx4 v[8:11], v5, s[32:35], s59 offen
k1_end2:
    s_mov_b64 exec, -1
    """)
    A.endpgm(0)
    A("k1_done:\ns_endpgm")
    A.end_kernel(k, vgpr=208, sgpr=80)
    A.launch(k, (256,1,1), (256,1,1), lds=2048)

H_COPY = 4160; H_CH = 4*H_COPY
U_BASE = 2*H_CH
U_CH = 4608
X_BASE = U_BASE + 2*U_CH
K2_LDS = X_BASE + 4*4096

def side_body(A):
    A("""
    s_sub_u32 s63, s2, 256                 ; unit u
    s_load_dwordx4 s[4:7], s[0:1], 56      ; w1, w2
    s_load_dwordx2 s[8:9], s[0:1], 104     ; ws
    v_lshrrev_b32 v1, 6, v0
    v_and_b32 v2, 63, v0                   ; fp
    v_readfirstlane_b32 s10, v1            ; dg
    s_and_b32 s11, s63, 15                 ; db
    s_lshr_b32 s12, s63, 4                 ; fb
    s_lshl_b32 s13, s11, 5
    s_lshl_b32 s14, s10, 3
    s_add_u32 s13, s13, s14                ; d0
    s_waitcnt lgkmcnt(0)
    """)
    A.srd_from(16, 4, SIZE['w1']); A.srd_from(20, 6, SIZE['w2'])
    A.srd_from(64, 8, 4*3072*4, WS_MODP)
    A(f"""
    v_lshrrev_b32 v60, 3, v2
    v_and_b32 v61, 7, v2
    v_lshlrev_b32 v60, 11, v60
    v_lshl_add_u32 v60, v61, 2, v60
    s_lshl_b32 s14, s13, 2
    s_add_u32 s14, s14, {3*2048}
    buffer_load_dword v61, v60, s[64:67], s14 offen
    s_add_u32 s14, s14, 12288
    buffer_load_dword v62, v60, s[64:67], s14 offen
    s_add_u32 s14, s14, 12288
    buffer_load_dword v63, v60, s[64:67], s14 offen
    s_add_u32 s14, s14, 12288
    buffer_load_dword v64, v60, s[64:67], s14 offen
    s_and_b32 s14, s63, 1
    s_lshl_b32 s14, s14, 10
    s_add_u32 s14, s14, {5*2048}
    v_lshlrev_b32 v65, 2, v0
    buffer_load_dword v66, v65, s[64:67], s14 offen
    s_add_u32 s15, s14, 12288
    buffer_load_dword v67, v65, s[64:67], s15 offen
    s_add_u32 s15, s15, 12288
    buffer_load_dword v68, v65, s[64:67], s15 offen
    s_add_u32 s15, s15, 12288
    buffer_load_dword v69, v65, s[64:67], s15 offen
    s_mov_b32 s68, s14
    s_lshl_b32 s14, s12, 8
    v_lshlrev_b32 v3, 2, v2
    v_add_u32 v3, s14, v3
    s_mul_i32 s14, s13, 3584
    """)
    for i in range(8):
        A(f"buffer_load_dword v{8+i}, v3, s[16:19], s14 offen")
        if i < 7: A("s_add_u32 s14, s14, 3584")
    A("""
    s_lshr_b32 s26, s63, 2                 ; F
    s_lshr_b32 s27, s63, 1
    s_and_b32 s27, s27, 1                  ; a
    s_and_b32 s28, s63, 1                  ; g
    s_lshl_b32 s29, s26, 5
    s_lshl_b32 s30, s27, 4
    s_add_u32 s29, s29, s30
    s_lshl_b32 s30, s28, 2
    s_add_u32 s29, s29, s30
    s_lshl_b32 s29, s29, 10
    v_lshlrev_b32 v4, 2, v0
    """)
    for j in range(8):
        A(f"s_add_u32 s30, s29, {(8*(j>>2) + (j&3))*1024}")
        A(f"buffer_load_dword v{16+j}, v4, s[20:23], s30 offen")
    A.srd_from(48, 8, SIZE['w1'], WS_W1F); A.srd_from(52, 8, SIZE['w2'], WS_W2F); A.srd_from(56, 8, 16*2*1792*4, WS_C12P)
    A("""
    s_mov_b32 s60, 0x05040100
    s_mov_b32 s61, 0x07060302
    s_mov_b32 s62, 0x3f803f80
    s_waitcnt vmcnt(16)
    v_add_f32 v61, v61, v62
    v_add_f32 v63, v63, v64
    v_add_f32 v66, v66, v67
    v_add_f32 v68, v68, v69
    v_add_f32 v61, v61, v63
    v_add_f32 v66, v66, v68
    v_cvt_pk_bf16_f32 v61, v61, v66
    v_and_b32 v66, 0xffff0000, v61
    v_lshlrev_b32 v61, 16, v61
    v_add_f32 v62, 1.0, v61
    v_cvt_pk_bf16_f32 v62, v62, v62
    v_lshlrev_b32 v62, 16, v62
    """)
    for i in range(8):
        A(f"v_readlane_b32 s{32+i}, v61, {i}\nv_readlane_b32 s{40+i}, v62, {8+i}")
    A.srd_from(64, 8, 3072*4, WS_MOD)
    A("""
    s_cmp_ge_u32 s63, 2
    s_cbranch_scc1 side_nogb
    buffer_store_dword v66, v65, s[64:67], s68 offen
side_nogb:
    s_waitcnt vmcnt(8)
    """)
    for i in range(8):
        A(f"v_lshlrev_b32 v{24+i}, 16, v{8+i}\nv_and_b32 v{32+i}, 0xffff0000, v{8+i}")
    A("v_mul_f32 v42, s32, v24\nv_mul_f32 v43, s32, v32")
    for i in range(1, 8):
        A(f"v_fmac_f32 v42, s{32+i}, v{24+i}\nv_fmac_f32 v43, s{32+i}, v{32+i}")
    for i in range(8):
        A(f"v_mul_f32 v{24+i}, s{40+i}, v{24+i}\nv_mul_f32 v{32+i}, s{40+i}, v{32+i}")
    for d in range(4):
        A(f"v_cvt_pk_bf16_f32 v{44+d}, v{24+2*d}, v{25+2*d}")
        A(f"v_cvt_pk_bf16_f32 v{48+d}, v{32+2*d}, v{33+2*d}")
    A("v_mov_b32 v40, 0\nv_mov_b32 v41, 0")
    for d in range(4):
        A(f"v_dot2c_f32_bf16 v40, s62, v{44+d}\nv_dot2c_f32_bf16 v41, s62, v{48+d}")
    A("""
    s_lshl_b32 s14, s12, 17
    s_lshl_b32 s15, s11, 11
    s_add_u32 s14, s14, s15
    s_lshr_b32 s15, s10, 1
    s_lshl_b32 s15, s15, 10
    s_add_u32 s14, s14, s15
    s_and_b32 s15, s10, 1
    s_lshl_b32 s15, s15, 9
    s_add_u32 s14, s14, s15
    v_lshrrev_b32 v5, 4, v2
    v_lshlrev_b32 v5, 15, v5
    v_and_b32 v6, 15, v2
    v_lshl_add_u32 v5, v6, 5, v5
    buffer_store_dwordx4 v[44:47], v5, s[48:51], s14 offen
    buffer_store_dwordx4 v[48:51], v5, s[48:51], s14 offen offset:16
    v_lshlrev_b32 v6, 4, v2
    s_lshl_b32 s15, s10, 10
    v_add_u32 v6, s15, v6
    ds_write_b128 v6, v[40:43]
    s_waitcnt vmcnt(2)
    """)
    for e in range(2):
        sel = "s60" if e == 0 else "s61"
        for d in range(4):
            A(f"v_perm_b32 v{52+4*e+d}, v{16+2*d+1}, v{16+2*d}, {sel}")
    A("""
    v_lshrrev_b32 v5, 5, v0
    s_mov_b32 s15, 229376
    v_mul_lo_u32 v5, v5, s15
    v_lshrrev_b32 v6, 4, v0
    v_and_b32 v6, 1, v6
    v_lshl_add_u32 v5, v6, 10, v5
    v_and_b32 v6, 15, v0
    v_lshl_add_u32 v5, v6, 5, v5
    s_lshl_b32 s14, s26, 12
    s_lshl_b32 s15, s27, 11
    s_add_u32 s14, s14, s15
    s_lshl_b32 s15, s28, 9
    s_add_u32 s14, s14, s15
    buffer_store_dwordx4 v[52:55], v5, s[52:55], s14 offen
    buffer_store_dwordx4 v[56:59], v5, s[52:55], s14 offen offset:16
    s_waitcnt lgkmcnt(0)
    s_barrier
    v_and_b32 v6, 127, v0
    v_lshrrev_b32 v7, 7, v0
    v_lshrrev_b32 v5, 1, v6
    v_lshlrev_b32 v5, 4, v5
    v_lshl_add_u32 v5, v7, 3, v5
    v_and_b32 v8, 1, v0
    v_lshl_add_u32 v5, v8, 2, v5
    ds_read_b32 v8, v5
    ds_read_b32 v9, v5 offset:1024
    ds_read_b32 v10, v5 offset:2048
    ds_read_b32 v11, v5 offset:3072
    v_mul_u32_u24 v7, 7168, v7
    v_lshl_add_u32 v7, v6, 2, v7
    s_mul_i32 s14, s11, 14336
    s_lshl_b32 s15, s12, 9
    s_add_u32 s14, s14, s15
    s_waitcnt lgkmcnt(0)
    v_add_f32 v8, v8, v9
    v_add_f32 v10, v10, v11
    v_add_f32 v8, v8, v10
    buffer_store_dword v8, v7, s[56:59], s14 offen
    """)

def k2(A, side=None):
    k = "k2_conv_kernel"; A.begin_kernel(k)
    A("""
    s_cmp_ge_u32 s2, 480
    s_cbranch_scc1 k2_done
    """)
    A.prof_begin()
    if PREF:
        A("s_cmp_ge_u32 s2, 8\ns_cbranch_scc1 k2_nopf")
        A.code_prefetch("k2_pf_start", "k2_done", 24, "v195", "v196", 8192)
        A("k2_nopf:\nk2_pf_start:")
    A("""
    s_cmp_ge_u32 s2, 256
    s_cbranch_scc1 k2_side
    """)
    A("""
    s_load_dwordx4 s[4:7], s[0:1], 32
    s_load_dwordx2 s[8:9], s[0:1], 104     ; ws
    v_lshrrev_b32 v1, 6, v0
    v_and_b32 v2, 63, v0                   ; lane
    v_readfirstlane_b32 s10, v1            ; wave
    s_lshr_b32 s11, s10, 1                 ; c
    s_and_b32 s12, s10, 1                  ; pi
    s_lshl_b32 s13, s2, 1
    s_add_u32 s13, s13, s11                ; ch
    s_lshl_b32 s14, s13, 12                ; ch*4096
    v_and_b32 v3, 15, v2                   ; n (or i)
    v_lshrrev_b32 v4, 4, v2                ; g
    s_waitcnt lgkmcnt(0)
    """)
    A("""
    s_add_u32 s16, s4, s14
    s_addc_u32 s17, s5, 0
    s_mov_b32 s18, 4096
    s_mov_b32 s19, 0x20000
    s_add_u32 s20, s8, s14
    s_addc_u32 s21, s9, 0
    s_mov_b32 s22, 4096
    s_mov_b32 s23, 0x20000
    """)
    A("""
    s_lshl_b32 s15, s12, 11                ; pi*128*16
    v_lshlrev_b32 v5, 4, v2
    v_add_u32 v5, s15, v5                  ; 16 a  (i=0)
    v_subrev_u32 v6, 8, v5                 ; 16 a - 8
    buffer_load_dwordx2 v[8:9], v6, s[16:19], 0 offen
    buffer_load_dwordx4 v[10:13], v5, s[16:19], 0 offen
    buffer_load_dwordx2 v[14:15], v6, s[16:19], 0 offen offset:1024
    buffer_load_dwordx4 v[16:19], v5, s[16:19], 0 offen offset:1024
    ; u DMA: this wave loads bytes [pi*2048, +2048) of the row -> LDS U_c + 512 + pi*2048
    s_mul_i32 s36, s11, %d
    s_add_u32 s36, s36, %d
    s_lshl_b32 s37, s12, 11
    s_add_u32 s38, s36, s37
    s_add_u32 s38, s38, 512
    v_lshlrev_b32 v7, 4, v2
    v_add_u32 v7, s37, v7
    s_mov_b32 m0, s38
    s_nop 0
    buffer_load_dwordx4 v7, s[20:23], 0 offen lds
    s_add_u32 s38, s38, 1024
    s_mov_b32 m0, s38
    s_nop 0
    v_add_u32 v20, 1024, v7
    buffer_load_dwordx4 v20, s[20:23], 0 offen lds
    """ % (U_CH, U_BASE))
    A(f"""
    s_add_u32 s24, s8, {WS_QT}
    s_addc_u32 s25, s9, 0
    s_add_u32 s24, s24, s14
    s_addc_u32 s25, s25, 0
    s_mov_b32 s26, 4096
    s_mov_b32 s27, 0x20000
    s_add_u32 s28, s8, {WS_X1T}
    s_addc_u32 s29, s9, 0
    s_add_u32 s28, s28, s14
    s_addc_u32 s29, s29, 0
    s_mov_b32 s30, 4096
    s_mov_b32 s31, 0x20000
    s_add_u32 s32, s8, {WS_R1}
    s_addc_u32 s33, s9, 0
    s_mov_b32 s34, 0x4000
    s_mov_b32 s35, 0x20000
    v_lshlrev_b32 v192, 4, v3
    v_lshl_add_u32 v192, v4, 2, v192         ; vS = 16n + 4g
    s_lshl_b32 s39, s12, 10
    v_add_u32 v192, s39, v192
    v_lshlrev_b32 v193, 1, v192              ; *2 bytes  (q, x1, u)
    v_lshlrev_b32 v194, 2, v192
    s_movk_i32 s40, 0x2000
    """)
    QR = 200; SR = 208
    for tt in range(4):
        A(f"buffer_load_dwordx2 v[{QR+2*tt}:{QR+2*tt+1}], v193, s[24:27], 0 offen offset:{512*tt}")
    for tt in range(4):
        A(f"buffer_load_dwordx4 v[{SR+4*tt}:{SR+4*tt+3}], v194, s[32:35], 0 offen offset:{1024*tt}")
        A(f"buffer_load_dwordx4 v[{SR+16+4*tt}:{SR+16+4*tt+3}], v194, s[32:35], s40 offen offset:{1024*tt}")
    A(f"""
    s_lshl_b32 s41, s13, 2
    s_add_u32 s42, s8, {WS_MODP}
    s_addc_u32 s43, s9, 0
    s_add_u32 s42, s42, s41
    s_addc_u32 s43, s43, 0
    """)
    for v in range(3):
        for kq in range(4):
            A(f"s_load_dword s{44+4*v+kq}, s[42:43], {kq*12288 + v*2048}")
    A("""
    s_lshl_b32 s41, s2, 2
    s_add_u32 s6, s6, s41
    s_addc_u32 s7, s7, 0
    s_load_dword s56, s[6:7], 0
    """)
    A(f"""
    v_mov_b32 v24, 0
    v_mov_b32 v25, 0
    v_mov_b32 v26, 0
    v_mov_b32 v27, 0
    s_mul_i32 s57, s11, {H_CH}             ; H_c
    v_lshlrev_b32 v28, 4, v2
    v_add_u32 v28, s36, v28
    v_subrev_u32 v29, 32, v2
    v_lshrrev_b32 v30, 1, v29
    v_mul_u32_u24 v30, {H_COPY}, v30
    v_and_b32 v29, 1, v2
    v_lshl_add_u32 v30, v29, 4, v30
    v_add_u32 v30, s57, v30
    v_cmp_gt_u32 vcc, 32, v2
    v_cndmask_b32 v28, v30, v28, vcc
    v_cmp_gt_u32 vcc, 40, v2
    s_cmp_eq_u32 s12, 0
    s_cselect_b64 s[58:59], vcc, 0
    s_mov_b64 exec, s[58:59]
    s_cbranch_execz k2_nozero
    ds_write_b128 v28, v[24:27]
k2_nozero:
    s_mov_b64 exec, -1
    """)
    A("s_waitcnt vmcnt(14)"); A.prof_mark(0)
    A(f"""
    ; W address: H_c + 16 a + 32
    v_add_u32 v31, s57, v5
    v_cmp_eq_u32 vcc, 0, v5
    v_cndmask_b32 v8, v8, v24, vcc
    v_cndmask_b32 v9, v9, v24, vcc
    """)
    for i,(b) in enumerate((8, 14)):
        d2,d3,d4,d5,d6,d7 = [f"v{b+j}" for j in range(6)]
        off = 32 + 1024*i
        A(f"ds_write_b128 v31, v[{b+2}:{b+5}] offset:{off + 3*H_COPY}")
        A(f"v_mov_b32 v32, {d3}\nv_mov_b32 v33, {d4}\nv_mov_b32 v34, {d5}\nv_mov_b32 v35, {d6}")
        A(f"ds_write_b128 v31, v[32:35] offset:{off + 1*H_COPY}")
        A(f"v_alignbit_b32 v36, {d3}, {d2}, 16\nv_alignbit_b32 v37, {d4}, {d3}, 16\nv_alignbit_b32 v38, {d5}, {d4}, 16\nv_alignbit_b32 v39, {d6}, {d5}, 16")
        A(f"ds_write_b128 v31, v[36:39] offset:{off + 0*H_COPY}")
        A(f"v_alignbit_b32 v40, {d4}, {d3}, 16\nv_alignbit_b32 v41, {d5}, {d4}, 16\nv_alignbit_b32 v42, {d6}, {d5}, 16\nv_alignbit_b32 v43, {d7}, {d6}, 16")
        A(f"ds_write_b128 v31, v[40:43] offset:{off + 2*H_COPY}")
    A(f"""
    s_lshl_b32 s60, s12, 6
    s_sub_u32 s61, s36, s60
    s_add_u32 s61, s61, 96
    v_lshlrev_b32 v44, 5, v3
    v_lshl_add_u32 v44, v4, 4, v44
    v_add_u32 v44, s61, v44
    s_add_u32 s62, s57, s60
    s_add_u32 s62, s62, 56
    v_and_b32 v45, 3, v3
    v_mul_u32_u24 v45, {H_COPY}, v45
    v_lshrrev_b32 v46, 2, v3
    v_lshl_add_u32 v45, v46, 3, v45
    v_lshlrev_b32 v46, 4, v4
    v_sub_u32 v45, v45, v46
    v_add_u32 v45, s62, v45
    s_waitcnt vmcnt(12) lgkmcnt(0)
    s_barrier
    """)
    A.prof_mark(1)
    BR = 64
    ACC = 32+16
    ACC = 8
    AB = 48
    for s in range(32):
        A(f"ds_read_b128 v[{BR+4*s}:{BR+4*s+3}], v44 offset:{128*s}")
        if s == 14 or s==29: A("s_waitcnt lgkmcnt(4)")
    order = []
    for i in range(16): order += [31 - i, i]
    def rdA(idx):
        mu = order[idx]; b = AB + 4*(idx % 4)
        A(f"ds_read_b64 v[{b}:{b+1}], v45 offset:{128*mu+8}")
        A(f"ds_read_b64 v[{b+2}:{b+3}], v45 offset:{128*mu}")
    rdA(0); rdA(1)
    touched = set()
    for idx in range(32):
        if idx + 2 < 32:
            rdA(idx + 2)
            A("s_waitcnt lgkmcnt(4)")
        elif idx + 1 < 32: A("s_waitcnt lgkmcnt(2)")
        else: A("s_waitcnt lgkmcnt(0)")
        mu = order[idx]; b = AB + 4*(idx % 4)
        for t in range(mu // 4, 8):
            sl = 4*t - mu + 3
            acc = f"v[{ACC+4*t}:{ACC+4*t+3}]"
            c = acc if t in touched else "0"
            touched.add(t)
            A(f"v_mfma_f32_16x16x32_bf16 {acc}, v[{b}:{b+3}], v[{BR+4*sl}:{BR+4*sl+3}], {c}")
    A.prof_mark(2)
    A("""
    s_cmp_eq_u32 s12, 0
    s_cbranch_scc1 k2_noswap
    """)
    for i in range(16): A(f"v_swap_b32 v{ACC+i}, v{ACC+16+i}")
    A(f"""
k2_noswap:
    s_lshl_b32 s63, s10, 12
    s_add_u32 s63, s63, {X_BASE}
    v_lshlrev_b32 v46, 4, v2
    v_add_u32 v47, s63, v46
    s_xor_b32 s63, s10, 1
    s_lshl_b32 s63, s63, 12
    s_add_u32 s63, s63, {X_BASE}
    v_add_u32 v46, s63, v46
    """)
    for tt in range(4):
        A(f"ds_write_b128 v47, v[{ACC+16+4*tt}:{ACC+16+4*tt+3}] offset:{1024*tt}")
    A(f"s_add_u32 s64, s36, 512\nv_add_u32 v48, s64, v193")
    for tt in range(4):
        A(f"ds_read_b64 v[{50+2*tt}:{51+2*tt}], v48 offset:{512*tt}")
    A("""
    s_waitcnt lgkmcnt(0)
    s_barrier
    """)
    A.prof_mark(3)
    for tt in range(4):
        A(f"ds_read_b128 v[{64+4*tt}:{64+4*tt+3}], v46 offset:{1024*tt}")
    A("""
    v_mov_b32 v80, s44
    v_add_f32 v80, s45, v80
    v_add_f32 v80, s46, v80
    v_add_f32 v80, s47, v80
    v_mov_b32 v81, s48
    v_add_f32 v81, s49, v81
    v_add_f32 v81, s50, v81
    v_add_f32 v81, s51, v81
    v_mov_b32 v82, s52
    v_add_f32 v82, s53, v82
    v_add_f32 v82, s54, v82
    v_add_f32 v82, s55, v82
    """)
    A.rb("v80"); A.rb("v81"); A.rb("v82")
    A("v_add_f32 v81, 1.0, v81"); A.rb("v81")
    A("""
    s_lshl_b32 s65, s11, 4
    s_lshr_b32 s56, s56, s65
    s_lshl_b32 s56, s56, 16               ; D as f32
    s_waitcnt vmcnt(0) lgkmcnt(0)
    """)
    for tt in range(4):
        for r in range(4):
            y = f"v{ACC+4*tt+r}"
            A(f"v_add_f32 {y}, {y}, v{64+4*tt+r}")
        qd = [QR+2*tt, QR+2*tt+1]; ud = [50+2*tt, 51+2*tt]
        for r in range(4):
            y = f"v{ACC+4*tt+r}"
            qreg = f"v{qd[r>>1]}"; ureg = f"v{ud[(3-r)>>1]}"
            if r & 1: A(f"v_and_b32 v84, 0xffff0000, {qreg}")
            else: A(f"v_lshlrev_b32 v84, 16, {qreg}")
            if (3-r) & 1: A(f"v_and_b32 v85, 0xffff0000, {ureg}")
            else: A(f"v_lshlrev_b32 v85, 16, {ureg}")
            A(f"v_fma_f32 {y}, v85, s56, {y}")
            A(f"v_fma_f32 v86, v84, v{SR+4*tt+r}, -v{SR+16+4*tt+r}")
            A(f"v_fma_f32 v86, v86, v81, v80")
            A(f"v_mul_f32 v86, v86, {y}")
            A(f"v_fma_f32 {y}, v86, v82, v84")
        A(f"v_cvt_pk_bf16_f32 v{88+2*tt}, v{ACC+4*tt}, v{ACC+4*tt+1}")
        A(f"v_cvt_pk_bf16_f32 v{89+2*tt}, v{ACC+4*tt+2}, v{ACC+4*tt+3}")
        A(f"buffer_store_dwordx2 v[{88+2*tt}:{89+2*tt}], v193, s[28:31], 0 offen offset:{512*tt}")
    A("""
    """)
    A.endpgm(1)
    A("k2_side:")
    side_body(A)
    A.endpgm(1)
    A("k2_done:\ns_endpgm")
    A.end_kernel(k, vgpr=240, sgpr=80)
    A.launch(k, (480,1,1), (256,1,1), lds=K2_LDS)


K3_C = 131072; K3_ST = K3_C + 1024; K3_LDS = K3_ST + 1024
def k3(A):
    k = "k3_gemm1_kernel"; A.begin_kernel(k)
    A(f"""
    s_cmp_ge_u32 s2, 224
    s_cbranch_scc1 k3_done
    """)
    A.prof_begin()
    A("""
    s_load_dwordx2 s[8:9], s[0:1], 104     ; ws
    v_lshrrev_b32 v1, 6, v0
    v_and_b32 v2, 63, v0                   ; lane
    v_readfirstlane_b32 s10, v1            ; wave
    s_and_b32 s11, s2, 7                   ; x
    s_lshr_b32 s12, s2, 3                  ; j
    s_lshr_b32 s13, s11, 1
    s_lshl_b32 s13, s13, 2
    s_and_b32 s14, s12, 3
    s_add_u32 s13, s13, s14                ; rbk
    s_and_b32 s14, s11, 1
    s_mul_i32 s14, s14, 7
    s_lshr_b32 s15, s12, 2
    s_add_u32 s14, s14, s15                ; fb
    s_lshl_b32 s15, s14, 2
    s_add_u32 s15, s15, s10                ; F
    s_waitcnt lgkmcnt(0)
    """)
    A.srd_from(16, 8, 2048*512*2, WS_X1T)
    A(f"""
    s_lshl_b32 s3, s15, 15
    s_add_u32 s20, s8, {WS_W1F}
    s_addc_u32 s21, s9, 0
    s_add_u32 s20, s20, s3
    s_addc_u32 s21, s21, 0
    s_mov_b32 s22, 32768
    s_mov_b32 s23, 0x20000
    """)
    A.srd_from(24, 8, 16*2*1792*4, WS_C12P); A.srd_from(28, 8, 2048*1792*2, WS_HID)
    A("""
    v_and_b32 v3, 127, v0
    v_lshrrev_b32 v4, 7, v0
    v_mul_u32_u24 v4, 7168, v4
    v_lshl_add_u32 v4, v3, 2, v4
    s_lshl_b32 s3, s14, 9
    v_add_u32 v4, s3, v4
    s_mov_b32 s3, 0
    """)
    for db in range(16):
        A(f"buffer_load_dword v{200+db}, v4, s[24:27], s3 offen")
        if db < 15: A("s_add_u32 s3, s3, 14336")
    A("""
    v_lshrrev_b32 v5, 4, v2                ; row
    v_and_b32 v6, 15, v2                   ; p
    v_lshlrev_b32 v7, 2, v5
    v_xor_b32 v6, v6, v7
    v_lshlrev_b32 v6, 4, v6
    v_lshl_add_u32 v6, v5, 12, v6
    s_lshl_b32 s3, s13, 8
    v_add_u32 v6, s3, v6
    v_lshlrev_b32 v7, 4, v2                ; lane*16
    s_lshl_b32 s32, s10, 16
    s_lshl_b32 s33, s10, 12
    """)
    WR = 64
    def issue(c):
        for i in range(4):
            A(f"s_add_u32 s34, s32, {(64*c+4*i)*4096}")
            A(f"s_add_u32 m0, s33, {(64*c+4*i)*256}")
            A("s_nop 0")
            A(f"buffer_load_dwordx4 v6, s[16:19], s34 offen lds")
        A(f"s_mov_b32 s34, {c*4096}")
        for i in range(4):
            kk = 4*c+i
            A(f"buffer_load_dwordx4 v[{WR+4*kk}:{WR+4*kk+3}], v7, s[20:23], s34 offen offset:{i*1024}")
    for c in range(5): issue(c)
    A("s_waitcnt vmcnt(40)"); A.prof_mark(0)
    for i in range(8): A(f"v_add_f32 v{200+i}, v{200+i}, v{208+i}")
    for i in range(4): A(f"v_add_f32 v{200+i}, v{200+i}, v{204+i}")
    A("v_add_f32 v200, v200, v201\nv_add_f32 v202, v202, v203\nv_add_f32 v200, v200, v202")
    A(f"v_lshlrev_b32 v4, 2, v0\nds_write_b32 v4, v200 offset:0\n".replace("offset:0", f"offset:{0}") if False else "")
    A(f"v_lshlrev_b32 v4, 2, v0\nv_add_u32 v4, {K3_C}, v4\nds_write_b32 v4, v200")
    issue(5); issue(6)
    A("""
    v_lshrrev_b32 v12, 4, v2               ; G
    v_lshrrev_b32 v13, 2, v2
    v_and_b32 v13, 3, v13                  ; r
    v_and_b32 v14, 3, v2                   ; c4
    v_lshrrev_b32 v15, 1, v12              ; G>>1
    v_lshl_add_u32 v15, v15, 3, v13        ; 8(G>>1)+r
    v_lshlrev_b32 v15, 8, v15              ; *256
    v_and_b32 v16, 1, v12
    v_lshlrev_b32 v16, 1, v16
    v_lshrrev_b32 v17, 1, v14
    v_add_u32 v16, v16, v17                ; low2
    v_lshl_add_u32 v15, v16, 4, v15
    v_and_b32 v17, 1, v14
    v_lshl_add_u32 v15, v17, 3, v15
    """)
    for sl in range(4):
        A(f"s_add_u32 s35, s10, {sl}\ns_and_b32 s35, s35, 3\nv_xor_b32 v17, s35, v13\nv_lshl_add_u32 v{8+sl}, v17, 6, v15")
    ACC = 192
    BB = 16
    A("v_mov_b32 v48, 0\nv_mov_b32 v49, 0\ns_mov_b32 s36, 0x3f803f80")
    def rdB1(kap, sl):
        b = BB + 16*(kap & 1)
        off = 4096*(kap & 15)
        A(f"ds_read_b64_tr_b16 v[{b+4*sl}:{b+4*sl+1}], v{8+sl} offset:{off}")
        A(f"ds_read_b64_tr_b16 v[{b+4*sl+2}:{b+4*sl+3}], v{8+sl} offset:{off+1024}")
    def chunk_wait(c):
        if c == 0:
            A("s_waitcnt vmcnt(48) lgkmcnt(0)\ns_barrier"); issue(7)
        else:
            A(f"s_waitcnt vmcnt({8*(7-c)})\ns_barrier")
    chunk_wait(0)
    A.prof_mark(1)
    if os.environ.get("K3_PREWAIT"):
        A("s_waitcnt vmcnt(0)\ns_barrier"); A.prof_mark(0)
    for sl in range(4): rdB1(0, sl)
    nodot = os.environ.get("K3_NODOT")
    for kap in range(32):
        nxt = kap + 1 < 32
        if nxt and (kap + 1) % 4 == 0: chunk_wait((kap+1)//4)
        if kap + 1 == 16:
            for sl in range(4): A(f"v_add_u32 v{8+sl}, 0x10000, v{8+sl}")
        b = BB + 16*(kap & 1)
        for sl in range(4):
            if nxt: A(f"s_waitcnt lgkmcnt(6)")
            else: A(f"s_waitcnt lgkmcnt({2*(3-sl)})")
            acc = f"v[{ACC+16*sl}:{ACC+16*sl+15}]"
            c = acc if kap > 0 else "0"
            A(f"v_mfma_f32_32x32x16_bf16 {acc}, v[{WR+4*kap}:{WR+4*kap+3}], v[{b+4*sl}:{b+4*sl+3}], {c}")
            if nxt: rdB1(kap + 1, sl)
            if not nodot:
                d = sl
                A(f"v_dot2c_f32_bf16 v48, s36, v{b+d}\nv_dot2c_f32_bf16 v49, v{b+d}, v{b+d}")
    A.prof_mark(2)
    A(f"""
    v_mov_b32 v50, v48
    v_mov_b32 v51, v49
    v_permlane32_swap_b32 v48, v50
    v_permlane32_swap_b32 v49, v51
    v_add_f32 v48, v48, v50
    v_add_f32 v49, v49, v51
    v_mul_f32 v48, 0x3b000000, v48
    v_mul_f32 v49, 0x3b000000, v49
    v_fma_f32 v49, -v48, v48, v49
    v_max_f32 v49, 0, v49
    v_add_f32 v49, 0x3727c5ac, v49
    v_rsq_f32 v50, v49
    s_nop 0
    v_mul_f32 v51, v48, v50
    v_and_b32 v52, 31, v2
    v_lshlrev_b32 v52, 3, v52
    s_lshl_b32 s37, s10, 8
    s_add_u32 s37, s37, {K3_ST}
    v_add_u32 v53, s37, v52
    ds_write_b64 v53, v[50:51]
    s_waitcnt lgkmcnt(0)
    s_barrier
    """)
    A.prof_mark(3)
    for sl in range(4):
        A(f"s_add_u32 s37, s10, {sl}\ns_and_b32 s37, s37, 3\ns_lshl_b32 s37, s37, 8\ns_add_u32 s37, s37, {K3_ST}\nv_add_u32 v53, s37, v52\nds_read_b64 v[{56+2*sl}:{57+2*sl}], v53")
    A(f"""
    v_lshrrev_b32 v54, 5, v2
    v_lshlrev_b32 v54, 4, v54
    s_lshl_b32 s37, s10, 7
    s_add_u32 s37, s37, {K3_C}
    v_add_u32 v54, s37, v54
    """)
    for q in range(4):
        A(f"ds_read_b128 v[{64+4*q}:{64+4*q+3}], v54 offset:{32*q}")
        A(f"ds_read_b128 v[{80+4*q}:{80+4*q+3}], v54 offset:{512+32*q}")
    A("s_waitcnt lgkmcnt(0)")
    for sl in range(4):
        st = 56 + 2*sl
        A(f"""
        s_add_u32 s37, s10, {sl}
        s_and_b32 s37, s37, 3
        s_lshl_b32 s38, s13, 2
        s_add_u32 s37, s37, s38
        s_mul_i32 s37, s37, 56
        s_add_u32 s37, s37, s15
        s_lshl_b32 s37, s37, 11
        """)
        ob = 96 + 8*(sl & 1)
        for p in range(8):
            a0 = ACC + 16*sl + 2*p
            A(f"v_pk_fma_f32 v[{a0}:{a0+1}], v[{a0}:{a0+1}], v[{st}:{st+1}], v[{80+2*p}:{81+2*p}] op_sel:[0,0,0] op_sel_hi:[1,0,1]")
            A(f"v_pk_fma_f32 v[{a0}:{a0+1}], v[{64+2*p}:{65+2*p}], v[{st}:{st+1}], v[{a0}:{a0+1}] op_sel:[0,1,0] op_sel_hi:[1,1,1] neg_lo:[0,1,0] neg_hi:[0,1,0]")
            A(f"v_cvt_pk_bf16_f32 v{ob+p}, v{a0}, v{a0+1}")
            A(f"v_pk_max_i16 v{ob+p}, v{ob+p}, 0")
        A(f"buffer_store_dwordx4 v[{ob}:{ob+3}], v7, s[28:31], s37 offen")
        A(f"buffer_store_dwordx4 v[{ob+4}:{ob+7}], v7, s[28:31], s37 offen offset:1024")
    A("""
    """)
    A.endpgm(3)
    A("k3_done:\ns_endpgm")
    A.end_kernel(k, vgpr=256, sgpr=80)
    A.launch(k, (224,1,1), (256,1,1), lds=K3_LDS)

K4_P = 8192; K4_PW = 17408; K4_LDS = K4_P + 4*K4_PW
def k4(A):
    k = "k4_gemm2_kernel"; A.begin_kernel(k)
    A(f"""
    s_cmp_ge_u32 s2, 256
    s_cbranch_scc1 k4_done
    """)
    A.prof_begin()
    A(f"""
    s_load_dwordx2 s[8:9], s[0:1], 104     ; ws
    s_load_dwordx2 s[4:5], s[0:1], 88      ; out
    v_lshrrev_b32 v1, 6, v0
    v_and_b32 v2, 63, v0                   ; lane
    v_readfirstlane_b32 s10, v1            ; wave
    s_and_b32 s11, s2, 7                   ; x
    s_lshr_b32 s12, s2, 3                  ; j
    s_lshl_b32 s13, s11, 2
    s_and_b32 s14, s12, 3
    s_add_u32 s13, s13, s14                ; rb64
    s_lshr_b32 s14, s12, 2                 ; cbk
    s_waitcnt lgkmcnt(0)
    s_mul_i32 s3, s13, {2*114688}
    s_mul_i32 s15, s10, {14*2048}
    s_add_u32 s3, s3, s15
    s_add_u32 s16, s8, {WS_HID}
    s_addc_u32 s17, s9, 0
    s_add_u32 s16, s16, s3
    s_addc_u32 s17, s17, 0
    s_mov_b32 s18, {114688 + 14*2048}
    s_mov_b32 s19, 0x20000
    ; W2F SRD
    s_mul_i32 s3, s14, 229376
    s_mul_i32 s15, s10, {14*4096}
    s_add_u32 s3, s3, s15
    s_add_u32 s20, s8, {WS_W2F}
    s_addc_u32 s21, s9, 0
    s_add_u32 s20, s20, s3
    s_addc_u32 s21, s21, 0
    s_mov_b32 s22, {14*4096}
    s_mov_b32 s23, 0x20000
    """)
    A.srd_from(24, 8, 2048*512*2, WS_X1T); A.srd_from(28, 4, SIZE['out']); A.srd_from(32, 8, 3072*4, WS_MOD)
    A("""
    v_lshrrev_b32 v3, 3, v2
    v_and_b32 v4, 7, v2
    v_lshlrev_b32 v3, 12, v3
    v_lshl_add_u32 v3, v4, 4, v3
    s_lshl_b32 s3, s13, 7
    v_add_u32 v3, s3, v3
    s_lshl_b32 s3, s14, 6
    s_lshl_b32 s15, s10, 4
    s_add_u32 s3, s3, s15
    s_lshl_b32 s3, s3, 12
    s_lshl_b32 s15, s10, 11                ; LDS: 16 w * 128
    s_mov_b32 m0, s15
    s_nop 0
    buffer_load_dwordx4 v3, s[24:27], s3 offen lds
    s_add_u32 s3, s3, 32768
    s_add_u32 m0, s15, 1024
    s_nop 0
    buffer_load_dwordx4 v3, s[24:27], s3 offen lds
    v_lshlrev_b32 v7, 4, v2                ; lane*16
    """)
    RING = 10; RB = 16
    ACC = 176
    def issue(kk):
        b = RB + 16*(kk % RING)
        A(f"s_mov_b32 s36, {(kk>>2)*4096}")
        A(f"buffer_load_dwordx4 v[{b}:{b+3}], v7, s[16:19], s36 offen offset:{(kk&3)*1024}")
        A(f"s_mov_b32 s37, {114688 + (kk>>2)*4096}")
        A(f"buffer_load_dwordx4 v[{b+4}:{b+7}], v7, s[16:19], s37 offen offset:{(kk&3)*1024}")
        A(f"s_mov_b32 s38, {(kk>>1)*4096}")
        A(f"buffer_load_dwordx4 v[{b+8}:{b+11}], v7, s[20:23], s38 offen offset:{((kk&1)*2)*1024}")
        A(f"buffer_load_dwordx4 v[{b+12}:{b+15}], v7, s[20:23], s38 offen offset:{((kk&1)*2+1)*1024}")
    for kk in range(RING): issue(kk)
    for kk in range(28):
        rem = min(28, kk + RING) - kk - 1
        A(f"s_waitcnt vmcnt({4*rem})")
        if kk == 0: A.prof_mark(0)
        if kk == 14: A.prof_mark(1)
        b = RB + 16*(kk % RING)
        for Nl in range(2):
            for Sl in range(2):
                acc = f"v[{ACC+16*(2*Nl+Sl)}:{ACC+16*(2*Nl+Sl)+15}]"
                c = acc if kk > 0 else "0"
                A(f"v_mfma_f32_32x32x16_bf16 {acc}, v[{b+8+4*Nl}:{b+11+4*Nl}], v[{b+4*Sl}:{b+4*Sl+3}], {c}")
        if kk + RING < 28: issue(kk + RING)
    A.prof_mark(2)
    A(f"""
    v_lshrrev_b32 v8, 4, v2                ; G
    v_lshlrev_b32 v9, 6, v8                ; G*64 bytes
    s_lshl_b32 s3, s14, 8
    s_add_u32 s3, s3, {5*2048}
    """)
    for i in range(4): A(f"buffer_load_dwordx4 v[{16+4*i}:{19+4*i}], v9, s[32:35], s3 offen offset:{16*i}")
    A(f"""
    v_and_b32 v10, 31, v2
    v_mul_u32_u24 v10, 272, v10
    v_lshrrev_b32 v11, 5, v2
    v_lshl_add_u32 v10, v11, 4, v10
    s_mul_i32 s3, s10, {K4_PW}
    s_add_u32 s3, s3, {K4_P}
    v_add_u32 v10, s3, v10
    """)
    for Nl in range(2):
        for Sl in range(2):
            for q in range(4):
                a0 = ACC + 16*(2*Nl+Sl) + 4*q
                A(f"ds_write_b128 v10, v[{a0}:{a0+3}] offset:{Sl*32*272 + Nl*128 + q*32}")
    A("""
    v_lshrrev_b32 v12, 2, v2
    v_and_b32 v12, 3, v12                  ; r
    v_lshl_add_u32 v12, v8, 4, v12         ; 16G + r
    v_lshlrev_b32 v12, 7, v12
    v_and_b32 v13, 3, v2
    v_lshl_add_u32 v12, v13, 3, v12
    s_lshl_b32 s3, s10, 5
    v_add_u32 v12, s3, v12
    s_waitcnt lgkmcnt(0)
    s_barrier
    """)
    A.prof_mark(3)
    for i in range(4): A(f"ds_read_b64_tr_b16 v[{32+2*i}:{33+2*i}], v12 offset:{512*i}")
    A(f"""
    v_and_b32 v13, 15, v2
    s_lshl_b32 s3, s10, 4
    v_add_u32 v13, s3, v13                 ; s
    v_mul_u32_u24 v14, 272, v13
    v_add_u32 v14, v14, v9
    """)
    for w in range(4):
        for i in range(4):
            A(f"ds_read_b128 v[{48+16*w+4*i}:{48+16*w+4*i+3}], v14 offset:{K4_P + w*K4_PW + 16*i}")
    A("""
    s_lshl_b32 s3, s13, 6
    v_add_u32 v13, s3, v13
    v_lshlrev_b32 v13, 10, v13
    v_lshl_add_u32 v13, v8, 5, v13
    s_lshl_b32 s3, s14, 7
    s_waitcnt vmcnt(0) lgkmcnt(0)
    """)
    for e in range(16):
        A(f"v_add_f32 v{48+e}, v{48+e}, v{64+e}\nv_add_f32 v{80+e}, v{80+e}, v{96+e}")
    for e in range(16):
        A(f"v_add_f32 v{48+e}, v{48+e}, v{80+e}")
    for e in range(16):
        x = 32 + (e >> 1)
        if e & 1: A(f"v_and_b32 v44, 0xffff0000, v{x}")
        else: A(f"v_lshlrev_b32 v44, 16, v{x}")
        A(f"v_fma_f32 v{48+e}, v{48+e}, v{16+e}, v44")
    for d in range(8): A(f"v_cvt_pk_bf16_f32 v{64+d}, v{48+2*d}, v{49+2*d}")
    A("""
    buffer_store_dwordx4 v[64:67], v13, s[28:31], s3 offen
    buffer_store_dwordx4 v[68:71], v13, s[28:31], s3 offen offset:16
    """)
    A.endpgm(4)
    A("k4_done:\ns_endpgm")
    A.end_kernel(k, vgpr=240, sgpr=80)
    A.launch(k, (256,1,1), (256,1,1), lds=K4_LDS)


G_C = 131072; G_CP = G_C + 1024; G_LDS = G_CP + 4096
def k34(A):
    k = "k34_ffn_kernel"; A.begin_kernel(k)
    A("""
    s_cmp_ge_u32 s2, 256
    s_cbranch_scc1 k34_done
    """)
    A.prof_begin()
    if PREF:
        A("s_cmp_lt_u32 s2, 224\ns_cbranch_scc1 k34_nopf")
        A.code_prefetch("k34_pf_start", "k34_done", 24, "v250", "v251", 32768)
        A("k34_nopf:\nk34_pf_start:")
    A(f"""
    s_load_dwordx2 s[8:9], s[0:1], 104     ; ws
    s_load_dwordx2 s[4:5], s[0:1], 88      ; out
    v_lshrrev_b32 v1, 6, v0
    v_and_b32 v2, 63, v0                   ; lane
    v_readfirstlane_b32 s10, v1            ; wave
    s_and_b32 s11, s2, 7                   ; x
    s_lshr_b32 s12, s2, 3                  ; j
    s_lshr_b32 s6, s11, 1                  ; rg
    s_lshl_b32 s13, s6, 2
    s_and_b32 s14, s12, 3
    s_add_u32 s13, s13, s14
    s_and_b32 s14, s11, 1
    s_mul_i32 s14, s14, 7
    s_lshr_b32 s15, s12, 2
    s_add_u32 s14, s14, s15                ; fb
    s_lshl_b32 s15, s14, 2
    s_add_u32 s15, s15, s10                ; F
    s_lshl_b32 s44, s6, 3
    s_and_b32 s45, s11, 1
    s_lshl_b32 s45, s45, 2
    s_add_u32 s44, s44, s45
    s_and_b32 s45, s12, 3
    s_add_u32 s44, s44, s45                ; rb64
    s_lshr_b32 s45, s12, 2                 ; cbk
    v_lshlrev_b32 v7, 4, v2                ; lane*16
    s_waitcnt lgkmcnt(0)
    ; W2F SRD s[48:51]
    s_mul_i32 s3, s45, 229376
    s_mul_i32 s7, s10, {14*4096}
    s_add_u32 s3, s3, s7
    s_add_u32 s48, s8, {WS_W2F}
    s_addc_u32 s49, s9, 0
    s_add_u32 s48, s48, s3
    s_addc_u32 s49, s49, 0
    s_mov_b32 s50, {14*4096}
    s_mov_b32 s51, 0x20000
    """)
    A.srd_from(16, 8, 2048*512*2, WS_X1T)
    A.srd_from(52, 8, 0x8000, WS_FLAGS); A.srd_from(56, 8, 2048*8, WS_ST2)
    def w2f_load(V, i):
        V.op(f"s_mov_b32 s60, {(i>>2)*4096}\nbuffer_load_dwordx4 a[{4*i}:{4*i+3}], v7, s[48:51], s60 offen offset:{(i&3)*1024}", "w2")
    A("""
    s_cmp_ge_u32 s12, 28
    s_cbranch_scc1 k34_stats
    """)
    V = Vm(A)
    A(f"""
    s_lshl_b32 s3, s15, 15
    s_add_u32 s20, s8, {WS_W1F}
    s_addc_u32 s21, s9, 0
    s_add_u32 s20, s20, s3
    s_addc_u32 s21, s21, 0
    s_mov_b32 s22, 32768
    s_mov_b32 s23, 0x20000
    v_lshrrev_b32 v5, 4, v2                ; row
    v_and_b32 v6, 15, v2                   ; p
    v_lshlrev_b32 v3, 2, v5
    v_xor_b32 v6, v6, v3
    v_lshlrev_b32 v6, 4, v6
    v_lshl_add_u32 v6, v5, 12, v6
    s_lshl_b32 s3, s13, 8
    v_add_u32 v6, s3, v6
    s_lshl_b32 s32, s10, 16
    s_lshl_b32 s33, s10, 12
    """)
    WR = 64
    def chunk_ops(c, V):
        ops = []
        for i in range(4):
            ops.append(lambda i=i: V.op(f"s_add_u32 s34, s32, {(64*c+4*i)*4096}\ns_add_u32 m0, s33, {(64*c+4*i)*256}\ns_nop 0\nbuffer_load_dwordx4 v6, s[16:19], s34 offen lds", f"c{c}"))
            kk = 4*c+i
            ops.append(lambda i=i, kk=kk: V.op(f"s_mov_b32 s35, {c*4096}\nbuffer_load_dwordx4 v[{WR+4*kk}:{WR+4*kk+3}], v7, s[20:23], s35 offen offset:{i*1024}", f"c{c}"))
        return ops
    for o in chunk_ops(0, V): o()
    A.srd_from(24, 8, 16*2*1792*4, WS_C12P)
    A("""
    v_lshrrev_b32 v3, 5, v2
    v_mul_u32_u24 v3, 7168, v3
    v_and_b32 v4, 31, v2
    v_lshl_add_u32 v3, v4, 4, v3
    s_lshl_b32 s3, s14, 9
    s_mul_i32 s7, s10, 57344
    s_add_u32 s3, s3, s7
    """)
    for o in chunk_ops(1, V): o()
    for i in range(4):
        V.op(f"buffer_load_dwordx4 v[{192+4*i}:{195+4*i}], v3, s[24:27], s3 offen", "c12")
        if i < 3: A("s_add_u32 s3, s3, 14336")
    for o in chunk_ops(2, V): o()
    A.srd_from(28, 8, 2048*1792*2, WS_HID)
    A("""
    v_lshrrev_b32 v12, 4, v2               ; G
    v_lshrrev_b32 v13, 2, v2
    v_and_b32 v13, 3, v13                  ; r
    v_and_b32 v14, 3, v2                   ; c4
    v_lshrrev_b32 v15, 1, v12              ; G>>1
    v_lshl_add_u32 v15, v15, 3, v13        ; 8(G>>1)+r
    v_lshlrev_b32 v15, 8, v15              ; *256
    v_and_b32 v16, 1, v12
    v_lshlrev_b32 v16, 1, v16
    v_lshrrev_b32 v17, 1, v14
    v_add_u32 v16, v16, v17                ; low2
    v_lshl_add_u32 v15, v16, 4, v15
    v_and_b32 v17, 1, v14
    v_lshl_add_u32 v15, v17, 3, v15
    """)
    for sl in range(4):
        A(f"v_xor_b32 v17, {sl}, v13\nv_lshl_add_u32 v{8+sl}, v17, 6, v15")
    A("""
    s_and_b32 s3, s13, 3
    s_lshl_b32 s3, s3, 1
    s_lshl_b32 s7, s6, 3
    s_add_u32 s3, s3, s7
    s_add_u32 s3, s3, 224
    s_lshl_b32 s63, s3, 7
    v_and_b32 v50, 1, v2
    v_lshlrev_b32 v50, 7, v50
    v_and_b32 v52, 31, v2
    v_lshlrev_b32 v52, 3, v52
    s_lshl_b32 s62, s13, 10
    """)
    ACC = 192; BB = 16
    def rdB1(kap, sl):
        b = BB + 16*(kap & 1); off = 4096*(kap & 15)
        A(f"ds_read_b64_tr_b16 v[{b+4*sl}:{b+4*sl+1}], v{8+sl} offset:{off}")
        A(f"ds_read_b64_tr_b16 v[{b+4*sl+2}:{b+4*sl+3}], v{8+sl} offset:{off+1024}")
    w2n = [0]
    def w2op():
        i = w2n[0]; w2n[0] += 1
        return lambda: w2f_load(V, i)
    V.wait("c0"); A.prof_mark(0)
    A("s_barrier")
    for sl in range(4): rdB1(0, sl)
    def main_loop_A(par, V):
        w2loc = [0]
        def chunk_wait(c):
            V.wait(f"c{c}")
            A("s_barrier")
            if os.environ.get("CHMARK"): A.prof_mark(3 + c)
            if c == 3:
                A(f"""
                s_cmp_lg_u32 s10, 0
                s_cbranch_scc1 k34_noc12_{par}
                v_add_u32 v3, {G_CP}, v7
                ds_read_b128 v[56:59], v3
                ds_read_b128 v[60:63], v3 offset:1024
                s_waitcnt lgkmcnt(0)
                v_add_f32 v56, v56, v60
                v_add_f32 v57, v57, v61
                v_add_f32 v58, v58, v62
                v_add_f32 v59, v59, v63
                ds_read_b128 v[60:63], v3 offset:2048
                s_waitcnt lgkmcnt(0)
                v_add_f32 v56, v56, v60
                v_add_f32 v57, v57, v61
                v_add_f32 v58, v58, v62
                v_add_f32 v59, v59, v63
                ds_read_b128 v[60:63], v3 offset:3072
                s_waitcnt lgkmcnt(0)
                v_add_f32 v56, v56, v60
                v_add_f32 v57, v57, v61
                v_add_f32 v58, v58, v62
                v_add_f32 v59, v59, v63
                v_add_u32 v3, {G_C}, v7
                ds_write_b128 v3, v[56:59]
                s_waitcnt lgkmcnt(0)
k34_noc12_{par}:
                """)
        pending = []
        for kap in range(32):
            c = kap // 4
            if kap % 4 == 0:
                assert not pending
                if c + 3 <= 7: pending = chunk_ops(c + 3, V)
                else:
                    pending = []
                    for _ in range(W2_PER_CHUNK):
                        pending.append(lambda i=w2loc[0]: w2f_load(V, i)); w2loc[0] += 1
                if c == 5: V.op("buffer_load_dword v51, v50, s[52:55], s63 offen sc1", "fs")
                if c == 6:
                    V.wait("fs")
                    A("v_cmp_ne_u32 vcc, 1, v51\ns_mov_b64 s[46:47], vcc")
                    for sl in range(4):
                        V.op(f"buffer_load_dwordx2 v[{56+2*sl}:{57+2*sl}], v52, s[56:59], s62 offen offset:{256*sl} sc1", "st")
            nxt = kap + 1 < 32
            if nxt and (kap + 1) % 4 == 0: chunk_wait((kap+1)//4)
            if kap + 1 == 16:
                for sl in range(4): A(f"v_add_u32 v{8+sl}, 0x10000, v{8+sl}")
            b = BB + 16*(kap & 1)
            for sl in range(4):
                if nxt: A(f"s_waitcnt lgkmcnt(6)")
                else: A(f"s_waitcnt lgkmcnt({2*(3-sl)})")
                acc = f"v[{ACC+16*sl}:{ACC+16*sl+15}]"
                cc = acc if kap > 0 else "0"
                if kap == 0 and sl == 0:
                    V.wait("c12")
                    for e in range(4):
                        A(f"v_add_f32 v{56+e}, v{192+e}, v{196+e}\nv_add_f32 v{60+e}, v{200+e}, v{204+e}\nv_add_f32 v{56+e}, v{56+e}, v{60+e}")
                    A(f"s_lshl_b32 s3, s10, 10\ns_add_u32 s3, s3, {G_CP}\nv_add_u32 v3, s3, v7\nds_write_b128 v3, v[56:59]\ns_waitcnt lgkmcnt(0)")
                A(f"v_mfma_f32_32x32x16_bf16 {acc}, v[{WR+4*kap}:{WR+4*kap+3}], v[{b+4*sl}:{b+4*sl+3}], {cc}")
                if nxt: rdB1(kap + 1, sl)
                if (sl & 1) == par and pending: pending.pop(0)()
            if kap % 4 == 3:
                while pending: pending.pop(0)()
        return w2loc[0]
    W2_PER_CHUNK = int(os.environ.get("W2PC", "8"))
    if not os.environ.get("STAGGER"):
        w2n[0] = main_loop_A(1, V)
    else:
        V2 = V.clone()
        A("s_bitcmp1_b32 s10, 0\ns_cbranch_scc1 k34_A_odd")
        w2n[0] = main_loop_A(0, V)
        A("s_branch k34_A_join\nk34_A_odd:")
        main_loop_A(1, V2)
        assert V.ops == V2.ops
        V.done = min(V.done, V2.done)
        A("k34_A_join:")
    A.prof_mark(1)
    A("""
    s_cmp_eq_u64 s[46:47], 0
    s_cbranch_scc1 k34_stats_ok
    s_mov_b32 s61, 0
k34_pollS:
    buffer_load_dword v51, v50, s[52:55], s63 offen sc1
    s_waitcnt vmcnt(0)
    v_cmp_ne_u32 vcc, 1, v51
    s_cbranch_vccz k34_pollS_done
    s_add_u32 s61, s61, 1
    s_cmp_lt_u32 s61, 100000
    s_cbranch_scc1 k34_pollS
k34_pollS_done:
    """)
    for sl in range(4):
        A(f"buffer_load_dwordx2 v[{56+2*sl}:{57+2*sl}], v52, s[56:59], s62 offen offset:{256*sl} sc1")
    A("s_waitcnt vmcnt(0)\nk34_stats_ok:")
    A(f"""
    v_lshrrev_b32 v54, 5, v2
    v_lshlrev_b32 v54, 4, v54
    s_lshl_b32 s37, s10, 7
    s_add_u32 s37, s37, {G_C}
    v_add_u32 v54, s37, v54
    """)
    for q in range(4):
        A(f"ds_read_b128 v[{64+4*q}:{64+4*q+3}], v54 offset:{32*q}")
        A(f"ds_read_b128 v[{80+4*q}:{80+4*q+3}], v54 offset:{512+32*q}")
    V.wait("st", extra=" lgkmcnt(0)")
    A.prof_mark(2)
    for sl in range(4):
        st = 56 + 2*sl
        A(f"""
        s_lshl_b32 s38, s13, 2
        s_add_u32 s37, s38, {sl}
        s_mul_i32 s37, s37, 56
        s_add_u32 s37, s37, s15
        s_lshl_b32 s37, s37, 11
        """)
        ob = 96 + 8*sl
        for p in range(8):
            a0 = ACC + 16*sl + 2*p
            A(f"v_pk_fma_f32 v[{a0}:{a0+1}], v[{a0}:{a0+1}], v[{st}:{st+1}], v[{80+2*p}:{81+2*p}] op_sel:[0,0,0] op_sel_hi:[1,0,1]")
            A(f"v_pk_fma_f32 v[{a0}:{a0+1}], v[{64+2*p}:{65+2*p}], v[{st}:{st+1}], v[{a0}:{a0+1}] op_sel:[0,1,0] op_sel_hi:[1,1,1] neg_lo:[0,1,0] neg_hi:[0,1,0]")
            A(f"v_cvt_pk_bf16_f32 v{ob+p}, v{a0}, v{a0+1}")
            A(f"v_pk_max_i16 v{ob+p}, v{ob+p}, 0")
        V.op(f"buffer_store_dwordx4 v[{ob}:{ob+3}], v7, s[28:31], s37 offen sc1", "hs")
        V.op(f"buffer_store_dwordx4 v[{ob+4}:{ob+7}], v7, s[28:31], s37 offen offset:1024 sc1", "hs")
    A.prof_mark(3)
    while w2n[0] < 56: w2op()()
    V.wait("hs")
    A(f"""
    s_barrier
    s_cmp_lg_u32 s10, 0
    s_cbranch_scc1 k34_phaseB
    s_mul_i32 s3, s13, 14
    s_add_u32 s3, s3, s14
    s_lshl_b32 s3, s3, 7
    v_mov_b32 v3, 0
    v_mov_b32 v4, 1
    s_mov_b64 exec, 1
    buffer_store_dword v4, v3, s[52:55], s3 offen sc1
    s_mov_b64 exec, -1
    s_branch k34_phaseB
    """)
    A("k34_stats:")
    V = Vm(A)
    A("""
    s_and_b32 s3, s11, 1
    s_lshl_b32 s3, s3, 2
    s_add_u32 s3, s3, s12
    s_sub_u32 s3, s3, 28                   ; si
    s_lshl_b32 s7, s6, 3
    s_add_u32 s62, s7, s3
    v_lshrrev_b32 v3, 3, v2
    v_and_b32 v4, 7, v2                    ; rl
    v_lshlrev_b32 v5, 12, v3
    v_lshl_add_u32 v5, v4, 4, v5
    s_lshl_b32 s3, s62, 7
    v_add_u32 v5, s3, v5                   ; + R0*2
    s_lshl_b32 s34, s10, 19
    """)
    for i in range(16):
        V.op(f"buffer_load_dwordx4 v[{64+4*i}:{67+4*i}], v5, s[16:19], s34 offen", f"x{i}")
        if i < 15: A("s_add_u32 s34, s34, 32768")
    for e in range(16): A(f"v_mov_b32 v{16+e}, 0")
    for i in range(16):
        V.wait(f"x{i}")
        for d in range(4):
            A(f"v_lshlrev_b32 v{40+2*d}, 16, v{64+4*i+d}\nv_and_b32 v{41+2*d}, 0xffff0000, v{64+4*i+d}")
        for d in range(4):
            A(f"v_pk_add_f32 v[{16+2*d}:{17+2*d}], v[{16+2*d}:{17+2*d}], v[{40+2*d}:{41+2*d}]")
            A(f"v_pk_fma_f32 v[{24+2*d}:{25+2*d}], v[{40+2*d}:{41+2*d}], v[{40+2*d}:{41+2*d}], v[{24+2*d}:{25+2*d}]")
    A("""
    s_lshl_b32 s3, s10, 12
    v_lshlrev_b32 v5, 9, v3
    v_lshl_add_u32 v5, v4, 5, v5
    v_add_u32 v5, s3, v5
    ds_write_b128 v5, v[16:19]
    ds_write_b128 v5, v[20:23] offset:16
    ds_write_b128 v5, v[24:27] offset:256
    ds_write_b128 v5, v[28:31] offset:272
    s_waitcnt lgkmcnt(0)
    s_barrier
    s_cmp_ge_u32 s10, 2
    s_cbranch_scc1 k34_stats_wait
    s_lshl_b32 s3, s10, 8
    v_lshlrev_b32 v5, 2, v2
    v_add_u32 v5, s3, v5
    """)
    for g in range(32): A(f"ds_read_b32 v{64+g}, v5 offset:{g*512}")
    A("s_waitcnt lgkmcnt(0)")
    for st_ in (16, 8, 4, 2, 1):
        for e in range(st_): A(f"v_add_f32 v{64+e}, v{64+e}, v{64+st_+e}")
    A("""
    v_lshlrev_b32 v5, 2, v2
    s_cmp_eq_u32 s10, 0
    s_cbranch_scc1 k34_stats_w0
    ds_write_b32 v5, v64 offset:16384
    s_waitcnt lgkmcnt(0)
k34_stats_w0:
k34_stats_wait:
    s_barrier
    s_cmp_lg_u32 s10, 0
    s_cbranch_scc1 k34_stats_end
    ds_read_b32 v65, v5 offset:16384
    s_waitcnt lgkmcnt(0)
    v_mul_f32 v64, 0x3b000000, v64
    v_mul_f32 v65, 0x3b000000, v65
    v_fma_f32 v65, -v64, v64, v65
    v_max_f32 v65, 0, v65
    v_add_f32 v65, 0x3727c5ac, v65
    v_rsq_f32 v66, v65
    s_nop 0
    v_mul_f32 v67, v64, v66
    v_lshlrev_b32 v5, 3, v2
    s_lshl_b32 s3, s62, 9
    buffer_store_dwordx2 v[66:67], v5, s[56:59], s3 offen sc1
    s_waitcnt vmcnt(0)
    s_add_u32 s3, s62, 224
    s_lshl_b32 s3, s3, 7
    v_mov_b32 v3, 0
    v_mov_b32 v4, 1
    s_mov_b64 exec, 1
    buffer_store_dword v4, v3, s[52:55], s3 offen sc1
    s_mov_b64 exec, -1
k34_stats_end:
    """)
    V.done = len(V.ops)
    for i in range(56): w2f_load(V, i)
    A("""
    s_waitcnt vmcnt(0)
    s_barrier
    """)
    A("k34_phaseB:")
    if not os.environ.get("CHMARK"): A.prof_mark(4)
    V = Vm(A)
    A(f"""
    s_mul_i32 s3, s44, {2*114688}
    s_mul_i32 s7, s10, {14*2048}
    s_add_u32 s3, s3, s7
    s_add_u32 s16, s8, {WS_HID}
    s_addc_u32 s17, s9, 0
    s_add_u32 s16, s16, s3
    s_addc_u32 s17, s17, 0
    s_mov_b32 s18, {114688 + 14*2048}
    s_mov_b32 s19, 0x20000
    """)
    A.srd_from(24, 8, 2048*512*2, WS_X1T); A.srd_from(28, 4, SIZE['out']); A.srd_from(32, 8, 3072*4, WS_MOD)
    A("""
    v_lshrrev_b32 v3, 3, v2
    v_and_b32 v4, 7, v2
    v_lshlrev_b32 v3, 12, v3
    v_lshl_add_u32 v3, v4, 4, v3
    s_lshl_b32 s3, s44, 7
    v_add_u32 v3, s3, v3
    s_lshl_b32 s3, s45, 6
    s_lshl_b32 s7, s10, 4
    s_add_u32 s3, s3, s7
    s_lshl_b32 s3, s3, 12
    s_lshl_b32 s7, s10, 11                 ; LDS: 16 w * 128
    s_mov_b32 m0, s7
    """)
    V.op("s_nop 0\nbuffer_load_dwordx4 v3, s[24:27], s3 offen lds", "x1")
    V.op("s_add_u32 s3, s3, 32768\ns_add_u32 m0, s7, 1024\ns_nop 0\nbuffer_load_dwordx4 v3, s[24:27], s3 offen lds", "x1")
    A(f"""
    v_lshrrev_b32 v8, 4, v2                ; G
    v_lshlrev_b32 v9, 6, v8                ; G*64 bytes
    s_lshl_b32 s3, s45, 8
    s_add_u32 s3, s3, {5*2048}
    """)
    for i in range(4): V.op(f"buffer_load_dwordx4 v[{16+4*i}:{19+4*i}], v9, s[32:35], s3 offen offset:{16*i}", "gb")
    A(f"""
    s_mul_i32 s3, s10, 14
    s_lshr_b32 s3, s3, 2
    s_lshr_b32 s7, s44, 1
    s_mul_i32 s7, s7, 14
    s_add_u32 s3, s3, s7
    s_lshl_b32 s3, s3, 7
    v_and_b32 v3, 3, v2
    v_lshlrev_b32 v3, 7, v3
    s_mov_b32 s61, 0
k34_pollH:
    buffer_load_dword v4, v3, s[52:55], s3 offen sc1
    s_waitcnt vmcnt(0)
    v_cmp_ne_u32 vcc, 1, v4
    s_cbranch_vccz k34_pollH_done
    s_add_u32 s61, s61, 1
    s_cmp_lt_u32 s61, 100000
    s_cbranch_scc1 k34_pollH
k34_pollH_done:
    """)
    V.done = len(V.ops)
    (None if os.environ.get('CHMARK') else A.prof_mark(5))
    RING = 16; RB = 64; ACC = 192
    def hissue(kk):
        b = RB + 8*(kk % RING)
        V.op(f"s_mov_b32 s36, {(kk>>2)*4096}\nbuffer_load_dwordx4 v[{b}:{b+3}], v7, s[16:19], s36 offen offset:{(kk&3)*1024} sc1", f"h{kk}")
        V.op(f"s_mov_b32 s37, {114688 + (kk>>2)*4096}\nbuffer_load_dwordx4 v[{b+4}:{b+7}], v7, s[16:19], s37 offen offset:{(kk&3)*1024} sc1", f"h{kk}")
    PRE = int(os.environ.get("HPRE", "10"))
    def hops(kk, V):
        b = RB + 8*(kk % RING)
        return [lambda: V.op(f"s_mov_b32 s36, {(kk>>2)*4096}\nbuffer_load_dwordx4 v[{b}:{b+3}], v7, s[16:19], s36 offen offset:{(kk&3)*1024} sc1", f"h{kk}"),
                lambda: V.op(f"s_mov_b32 s37, {114688 + (kk>>2)*4096}\nbuffer_load_dwordx4 v[{b+4}:{b+7}], v7, s[16:19], s37 offen offset:{(kk&3)*1024} sc1", f"h{kk}")]
    for kk in range(PRE):
        for o in hops(kk, V): o()
    def main_loop_B(par, V):
        for kk in range(28):
            V.wait(f"h{kk}")
            if kk == 0: (None if os.environ.get('CHMARK') else A.prof_mark(6))
            b = RB + 8*(kk % RING)
            pend = hops(kk + PRE, V) if kk + PRE < 28 else []
            n = 0
            for Nl in range(2):
                for Sl in range(2):
                    acc = f"v[{ACC+16*(2*Nl+Sl)}:{ACC+16*(2*Nl+Sl)+15}]"
                    c = acc if kk > 0 else "0"
                    i = kk*2 + Nl
                    A(f"v_mfma_f32_32x32x16_bf16 {acc}, a[{4*i}:{4*i+3}], v[{b+4*Sl}:{b+4*Sl+3}], {c}")
                    if (n & 1) == par and pend: pend.pop(0)()
                    n += 1
    if not os.environ.get("STAGGER"):
        main_loop_B(0, V)
    else:
        V2 = V.clone()
        A("s_bitcmp1_b32 s10, 0\ns_cbranch_scc1 k34_B_odd")
        main_loop_B(0, V)
        A("s_branch k34_B_join\nk34_B_odd:")
        main_loop_B(1, V2)
        A("k34_B_join:")
    (None if os.environ.get('CHMARK') else A.prof_mark(7))
    A(f"""
    v_and_b32 v10, 31, v2
    v_mul_u32_u24 v10, 272, v10
    v_lshrrev_b32 v11, 5, v2
    v_lshl_add_u32 v10, v11, 4, v10
    s_mul_i32 s3, s10, {K4_PW}
    s_add_u32 s3, s3, {K4_P}
    v_add_u32 v10, s3, v10
    """)
    for Nl in range(2):
        for Sl in range(2):
            for q in range(4):
                a0 = ACC + 16*(2*Nl+Sl) + 4*q
                A(f"ds_write_b128 v10, v[{a0}:{a0+3}] offset:{Sl*32*272 + Nl*128 + q*32}")
    A("""
    v_lshrrev_b32 v12, 2, v2
    v_and_b32 v12, 3, v12                  ; r
    v_lshl_add_u32 v12, v8, 4, v12         ; 16G + r
    v_lshlrev_b32 v12, 7, v12
    v_and_b32 v13, 3, v2
    v_lshl_add_u32 v12, v13, 3, v12
    s_lshl_b32 s3, s10, 5
    v_add_u32 v12, s3, v12
    s_waitcnt lgkmcnt(0)
    s_barrier
    """)
    (None if os.environ.get('CHMARK') else A.prof_mark(8))
    for i in range(4): A(f"ds_read_b64_tr_b16 v[{32+2*i}:{33+2*i}], v12 offset:{512*i}")
    A(f"""
    v_and_b32 v13, 15, v2
    s_lshl_b32 s3, s10, 4
    v_add_u32 v13, s3, v13                 ; s
    v_mul_u32_u24 v14, 272, v13
    v_add_u32 v14, v14, v9
    """)
    for w in range(4):
        for i in range(4):
            A(f"ds_read_b128 v[{48+16*w+4*i}:{48+16*w+4*i+3}], v14 offset:{K4_P + w*K4_PW + 16*i}")
    A("""
    s_lshl_b32 s3, s44, 6
    v_add_u32 v13, s3, v13
    v_lshlrev_b32 v13, 10, v13
    v_lshl_add_u32 v13, v8, 5, v13
    s_lshl_b32 s3, s45, 7
    s_waitcnt lgkmcnt(0)
    """)
    for e in range(16):
        A(f"v_add_f32 v{48+e}, v{48+e}, v{64+e}\nv_add_f32 v{80+e}, v{80+e}, v{96+e}")
    for e in range(16):
        A(f"v_add_f32 v{48+e}, v{48+e}, v{80+e}")
    for e in range(16):
        x = 32 + (e >> 1)
        if e & 1: A(f"v_and_b32 v44, 0xffff0000, v{x}")
        else: A(f"v_lshlrev_b32 v44, 16, v{x}")
        A(f"v_fma_f32 v{48+e}, v{48+e}, v{16+e}, v44")
    for d in range(8): A(f"v_cvt_pk_bf16_f32 v{64+d}, v{48+2*d}, v{49+2*d}")
    A("""
    buffer_store_dwordx4 v[64:67], v13, s[28:31], s3 offen
    buffer_store_dwordx4 v[68:71], v13, s[28:31], s3 offen offset:16
    """)
    A.endpgm(3, nmarks=11)
    A("k34_done:\ns_endpgm")
    A.end_kernel(k, vgpr=512, sgpr=80, accum=256)
    A.launch(k, (256,1,1), (256,1,1), lds=G_LDS)

if __name__ == "__main__":
    A = Asm()
    A.prof = bool(int(os.environ.get("PROF", "0")))
    A.dbgprof = bool(int(os.environ.get("DBGPROF", "0")))
    which = sys.argv[2].split(",") if len(sys.argv) > 2 else ["k1"]
    for w in which:
        if w.startswith("+"):
            nm = [l for l in A.launches if l[0].startswith(w[1:])][0]
            A.launches.append(nm)
        else: globals()[w](A)
    open(sys.argv[1], "w").write(A.text())
```

```python
import re
KN = "adaLN_cond__ssm_conv_h3__dense_activation_relu__prompt"

HEADER = """; Kernarg layout for this problem (112 bytes, ptrs only, base s[0:1]):
"""
ARG = dict(q=0, k=8, v=16, shift=24, ssmk=32, ssmD=40, bx=48, w1=56, w2=64, c=72, wmod=80, out=88, dbg=96, ws=104)
SIZE = dict(q=2048*512*2, k=2048*512*2, v=2048*512*2, shift=512*4*2, ssmk=512*2048*2, ssmD=512*2, w1=512*1792*2,
            w2=1792*512*2, c=512*2, wmod=512*3072*2, out=2048*512*2, dbg=256, ws=268435456)

TRANS = ("v_exp_f32","v_log_f32","v_rcp_f32","v_rsq_f32","v_sqrt_f32","v_sin_f32","v_cos_f32","v_rcp_iflag_f32",
         "v_exp_f16","v_log_f16","v_rcp_f16","v_rsq_f16","v_sqrt_f16")

def regs_of(op):
    op = op.strip()
    neg = op.lstrip("-")
    if neg.startswith("abs(") or neg.startswith("|"): neg = neg.strip("abs()|")
    op = neg
    m = re.fullmatch(r"([vsa])(\d+)", op)
    if m: return {(m.group(1), int(m.group(2)))}
    m = re.fullmatch(r"([vsa])\[(\d+):(\d+)\]", op)
    if m: return {(m.group(1), i) for i in range(int(m.group(2)), int(m.group(3)) + 1)}
    if op in ("vcc",): return {("s", 106), ("s", 107)}
    if op == "vcc_lo": return {("s", 106)}
    if op == "vcc_hi": return {("s", 107)}
    if op == "exec": return {("s", 126), ("s", 127)}
    if op == "m0": return {("s", 124)}
    return set()

class Ins:
    def __init__(self, text):
        self.text = text
        t = text.split(";")[0].strip()
        self.label = t.endswith(":")
        self.dir = t.startswith(".")
        if self.label or self.dir or not t:
            self.mn = None; return
        parts = t.split(None, 1)
        self.mn = parts[0]
        rest = parts[1] if len(parts) > 1 else ""
        ops = []; depth = 0; cur = ""
        for ch in rest:
            if ch == "[": depth += 1
            if ch == "]": depth -= 1
            if ch == "," and depth == 0: ops.append(cur.strip()); cur = ""
            else: cur += ch
        if cur.strip(): ops.append(cur.strip())
        mods = ""
        if ops:
            sp = ops[-1].split(None, 1)
            if len(sp) > 1: ops[-1] = sp[0]; mods = sp[1]
        self.ops = ops; self.mods = mods
        mn = self.mn
        self.is_mfma = mn.startswith("v_mfma") or mn.startswith("v_smfmac")
        self.is_valu = mn.startswith("v_") and not self.is_mfma
        self.is_salu = mn.startswith("s_")
        self.is_vmem = mn.startswith("buffer_") or mn.startswith("global_") or mn.startswith("flat_")
        self.is_ds = mn.startswith("ds_")
        self.is_trans = any(mn.startswith(x) for x in TRANS)
        self.is_dpp = bool(re.search(r"(row_shr|row_shl|row_ror|row_bcast|wave_sh|wave_ro|quad_perm|row_mirror|row_half_mirror|row_newbcast|row_share)", mods)) or mn.endswith("_dpp")
        self.is_permlane = mn.startswith("v_permlane")
        self.is_readlane = mn.startswith("v_readlane") or mn.startswith("v_readfirstlane") or mn.startswith("v_writelane")
        w = set(); r = set()
        R = [regs_of(o) for o in ops]
        if self.is_mfma:
            w = R[0]; self.srcA = R[1]; self.srcB = R[2]; self.srcC = R[3]; r = R[1] | R[2] | R[3]
            self.passes = 8 if "32x32" in mn else 4
            if "32x32x64" in mn or "16x16x128" in mn: self.passes *= 2
            if "4x4x4" in mn: self.passes = 2
            if "f32_32x32x2_f32" in mn: self.passes = 16
            if "f32_16x16x4_f32" in mn: self.passes = 8
        elif self.is_valu:
            if mn.startswith("v_cmpx"):
                w = R[0] | regs_of("exec"); r = set().union(*R[1:])
            elif mn.startswith("v_cmp"):
                w = R[0]; r = set().union(*R[1:])
            elif mn.startswith("v_permlane32_swap") or mn.startswith("v_permlane16_swap"):
                w = R[0] | R[1]; r = R[0] | R[1]
            elif re.match(r"v_(add|sub|subrev)_co_u32", mn):
                w = R[0] | R[1]; r = set().union(*R[2:])
            elif re.match(r"v_(addc|subb|subbrev)_co_u32", mn):
                w = R[0] | R[1]; r = set().union(*R[2:])
            elif mn.startswith("v_nop"):
                pass
            else:
                w = R[0]; r = set().union(*R[1:]) if len(R) > 1 else set()
                if mn.startswith("v_fmac") or mn.startswith("v_dot2c") or mn.startswith("v_mac") or mn.startswith("v_pk_fmac") or mn.startswith("v_writelane") or self.is_dpp or "sdwa" in mn or mn.startswith("v_cvt_sr") or mn.startswith("v_fmamk") :
                    r |= R[0]
                if mn.startswith("v_cndmask") and len(ops) == 3: r |= regs_of("vcc")
                if mn.startswith("v_div_fmas"): r |= regs_of("vcc")
        elif self.is_vmem:
            if "load" in mn and " lds" not in (" " + mods) and not mn.startswith("global_load_lds"):
                w = R[0]; r = set().union(*R[1:])
            elif "atomic" in mn and "sc0" in mods:
                w = R[0]; r = set().union(*R)
            else:
                r = set().union(*R) if R else set()
            if " lds" in (" " + mods) or mn.startswith("global_load_lds"): r |= regs_of("m0")
            self.wide_store = ("store" in mn) and (mn.endswith("x4") or mn.endswith("x3"))
            self.store_data = set()
            if "store" in mn:
                self.store_data = R[0] if mn.startswith("buffer_") else R[1]
        elif self.is_ds:
            if mn.startswith("ds_read") or mn.startswith("ds_bpermute") or mn.startswith("ds_permute") or mn.startswith("ds_swizzle") or "_rtn" in mn:
                w = R[0]; r = set().union(*R[1:])
            else:
                r = set().union(*R)
        elif self.is_salu:
            if mn.startswith("s_cmp") or mn.startswith("s_cbranch") or mn.startswith("s_branch") or mn in ("s_waitcnt","s_barrier","s_nop","s_endpgm","s_sleep","s_setprio") or mn.startswith("s_bitcmp"):
                r = set().union(*R) if R else set()
            else:
                w = R[0] if R else set(); r = set().union(*R[1:]) if len(R) > 1 else set()
                if "saveexec" in mn: w = w | regs_of("exec"); r |= regs_of("exec")
        self.w = w; self.r = r
    def states(self):
        if self.mn == "s_nop": return int(self.ops[0], 0) + 1
        return 1

def isv(S): return {x for x in S if x[0] in "va"}
def iss(S): return {x for x in S if x[0] == "s"}

def need(p, c):
    n = 0
    if p.is_valu:
        pv = isv(p.w); ps = iss(p.w)
        if pv:
            if c.is_valu and c.is_dpp and (pv & c.r): n = max(n, 2)
            if c.is_valu and c.is_readlane and (pv & c.r) and not c.mn.startswith("v_writelane"): n = max(n, 1)
            if c.is_valu and c.is_permlane and (pv & c.r): n = max(n, 2)
            if c.is_mfma and (pv & c.r): n = max(n, 2)
            if p.is_trans and c.is_valu and not c.is_trans and (pv & c.r): n = max(n, 1)
            if p.is_trans and (c.is_mfma or c.is_vmem or c.is_ds) and (pv & c.r): n = max(n, 1)
        if ps:
            if c.is_vmem and (ps & c.r): n = max(n, 5)
            if c.is_valu and (ps & c.r): n = max(n, 4 if c.is_readlane else 2)
            if c.is_salu and (ps & c.r): n = max(n, 4)
            if c.is_mfma and (ps & regs_of("exec")): n = max(n, 4)
            if (ps & regs_of("exec")) and c.is_valu and c.is_dpp: n = max(n, 5)
            if (ps & regs_of("exec")) and c.is_valu and (c.is_readlane or c.is_permlane): n = max(n, 4)
    if p.is_mfma:
        D = p.w
        big = {2: 5, 4: 8, 8: 12, 16: 20}[p.passes]
        if c.is_mfma:
            if D & (c.srcA | c.srcB): n = max(n, big)
            if D & c.srcC:
                if not (c.srcC == D and c.passes == p.passes): n = max(n, {2: 4, 4: 6, 8: 10, 16: 18}[p.passes])
                elif p.passes == 2: n = max(n, 2)
            elif D & c.w: n = max(n, {2: 4, 4: 6, 8: 10, 16: 18}[p.passes])
        elif c.is_valu or c.is_vmem or c.is_ds:
            if D & (c.r | c.w): n = max(n, big)
        if c.is_valu and (p.srcC & c.w): n = max(n, {2: 1, 4: 3, 8: 7, 16: 15}[p.passes])
    if p.is_vmem and getattr(p, "wide_store", False):
        if (c.is_valu or c.is_mfma) and (p.store_data & c.w): n = max(n, 2)
        elif (p.store_data & c.w): n = max(n, 1)
    if p.is_salu and (regs_of("m0") & p.w):
        if (c.is_vmem and (regs_of("m0") & c.r)): n = max(n, 1)
    return n

def pad_hazards(lines, window=24):
    out = []; hist = []
    npad = 0
    for text in lines:
        ins = Ins(text)
        if ins.mn is None:
            out.append(text); continue
        req = 0
        dist = 0
        for p in reversed(hist):
            k = need(p, ins)
            if k > dist: req = max(req, k - dist)
            dist += p.states()
            if dist > window: break
        while req > 0:
            k = min(req, 16)
            nop = Ins(f"s_nop {k-1}")
            out.append(f"    s_nop {k-1}"); hist.append(nop); req -= k; npad += 1
        out.append(text); hist.append(ins)
        if len(hist) > 64: hist = hist[-40:]
    return out, npad

class Asm:
    def __init__(self):
        self.lines = []
        self.kernels = []
        self.launches = []
        self.uid = 0
    def __call__(self, s=""):
        for l in s.split("\n"):
            l = l.strip()
            if not l or l.startswith(";"): continue
            m = re.search(r"offset:(-?\d+|0x[0-9a-fA-F]+)", l)
            if m:
                o = int(m.group(1), 0)
                if l.startswith("buffer_"): assert 0 <= o < 4096, l
                elif l.startswith("global_"): assert -4096 <= o < 4096, l
                elif l.startswith("ds_"): assert 0 <= o < 65536, l
            m = re.search(r"offset[01]:(\d+)", l)
            if m: assert int(m.group(1)) < 256, l
            self.lines.append(l if l.split(";")[0].strip().endswith(":") else "    " + l)
    def label(self, base="L"):
        self.uid += 1
        return f"{base}_{self.uid}"
    def begin_kernel(self, name):
        self.kstart = len(self.lines)
        self.lines.append(f".globl {name}")
        self.lines.append(".p2align 8")
        self.lines.append(f".type {name},@function")
        self.lines.append(f"{name}:")
    def end_kernel(self, name, vgpr=256, sgpr=102, accum=None, wgid_y=False):
        if self.prof or self.dbgprof: sgpr = 102
        mv = ms = ma = -1
        for l in self.lines[self.kstart:]:
            ins = Ins(l)
            if ins.mn is None: continue
            for o in ins.ops:
                for (t, n) in regs_of(o):
                    if t == "v": mv = max(mv, n)
                    if t == "a": ma = max(ma, n)
                    if t == "s" and n < 102: ms = max(ms, n)
        if accum is None: accum = min(256, (vgpr + 3) // 4 * 4)
        assert mv < accum and mv < vgpr, (name, "vgpr", mv, vgpr, accum)
        assert ma < 0 or accum + ma < vgpr, (name, "agpr", ma, accum, vgpr)
        assert ms < sgpr, (name, "sgpr", ms, sgpr)
        self.kernels.append((name, vgpr, sgpr, accum, wgid_y))
    def launch(self, name, grid, block, lds=0):
        self.launches.append((name, grid, block, lds))
    def text(self, single=False, pad=True):
        h = HEADER
        if single:
            name, g, b, lds = self.launches[0]
            h += f"; @launch grid=({g[0]},{g[1]},{g[2]}) block=({b[0]},{b[1]},{b[2]}) lds={lds}\n"
        else:
            for name, g, b, lds in self.launches:
                h += f"; @launch kernel={name} grid=({g[0]},{g[1]},{g[2]}) block=({b[0]},{b[1]},{b[2]}) lds={lds}\n"
        h += '.amdgcn_target "amdgcn-amd-amdhsa--gfx950"\n.text\n'
        lines = self.lines
        if pad:
            lines, n = pad_hazards(lines)
        h += "\n".join(lines) + "\n"
        h += '.section .rodata,"a"\n'
        for name, vgpr, sgpr, accum, wy in self.kernels:
            h += f".p2align 6\n.amdhsa_kernel {name}\n  .amdhsa_next_free_vgpr {vgpr}\n  .amdhsa_next_free_sgpr {sgpr}\n"
            h += f"  .amdhsa_accum_offset {accum}\n  .amdhsa_group_segment_fixed_size 0\n  .amdhsa_kernarg_size 112\n"
            h += "  .amdhsa_user_sgpr_count 2\n  .amdhsa_user_sgpr_kernarg_segment_ptr 1\n  .amdhsa_system_sgpr_workgroup_id_x 1\n"
            if wy: h += "  .amdhsa_system_sgpr_workgroup_id_y 1\n"
            h += "  .amdhsa_float_denorm_mode_32 3\n"
            h += ".end_amdhsa_kernel\n"
        return h

    def srd(self, s, arg, size=None, off=0):
        if size is None: size = SIZE[arg] - off
        self(f"s_load_dwordx2 s[{s}:{s+1}], s[0:1], {ARG[arg]}")
        self("s_waitcnt lgkmcnt(0)")
        if off:
            self(f"s_add_u32 s{s}, s{s}, {off}")
            self(f"s_addc_u32 s{s+1}, s{s+1}, 0")
        self(f"s_mov_b32 s{s+2}, {size}")
        self(f"s_mov_b32 s{s+3}, 0x20000")
    def srd_from(self, s, pair, size, off=0):
        if off:
            self(f"s_add_u32 s{s}, s{pair}, {off}")
            self(f"s_addc_u32 s{s+1}, s{pair+1}, 0")
        else:
            if s != pair:
                self(f"s_mov_b32 s{s}, s{pair}")
                self(f"s_mov_b32 s{s+1}, s{pair+1}")
        self(f"s_mov_b32 s{s+2}, {size}")
        self(f"s_mov_b32 s{s+3}, 0x20000")
    def code_prefetch(self, start_label, end_label, sreg, vtmp, vdst, nbytes_max, wave_sgpr=None):
        h = self.label("cp")
        self(f"s_getpc_b64 s[{sreg}:{sreg+1}]")
        self(f"{h}:")
        self(f"s_add_u32 s{sreg}, s{sreg}, {start_label}-{h}")
        self(f"s_addc_u32 s{sreg+1}, s{sreg+1}, 0")
        self(f"s_mov_b32 s{sreg+2}, {end_label}-{start_label}")
        self(f"s_mov_b32 s{sreg+3}, 0x20000")
        self(f"v_mbcnt_lo_u32_b32 {vtmp}, -1, 0")
        self(f"v_mbcnt_hi_u32_b32 {vtmp}, -1, {vtmp}")
        self(f"v_lshlrev_b32 {vtmp}, 7, {vtmp}")
        n = (nbytes_max + 8191) // 8192
        for i in range(n):
            if i == 0: self(f"buffer_load_dword {vdst}, {vtmp}, s[{sreg}:{sreg+3}], 0 offen")
            else:
                self(f"v_add_u32 {vtmp}, 0x2000, {vtmp}")
                self(f"buffer_load_dword {vdst}, {vtmp}, s[{sreg}:{sreg+3}], 0 offen")
        return n
    prof = False
    def prof_begin(self):
        self.dbg_begin()
        if not self.prof: return
        self("s_memrealtime s[92:93]")
        self("s_memtime s[82:83]")
    def mreg(self, n):
        return 84 + 2*n if n < 4 else 64 + 2*(n - 4)
    def prof_mark(self, n):
        if not self.prof: return
        r = self.mreg(n)
        self(f"s_memrealtime s[{r}:{r+1}]")
    dbgprof = False
    def dbg_begin(self):
        if self.dbgprof: self("s_memrealtime s[92:93]")
    def dbg_end(self, li):
        self("s_waitcnt vmcnt(0) lgkmcnt(0)")
        self("s_memrealtime s[94:95]")
        self("s_load_dwordx2 s[96:97], s[0:1], 96")
        self("s_waitcnt lgkmcnt(0)")
        self("s_and_b32 s3, s2, 15")
        self("s_cmp_lg_u32 s3, 5")
        lab = self.label("dbgskip")
        self(f"s_cbranch_scc1 {lab}")
        self(f"s_add_u32 s96, s96, {512*(2-li)}")
        self("s_addc_u32 s97, s97, 0")
        self("s_mov_b32 s98, 256")
        self("s_mov_b32 s99, 0x20000")
        self("s_mov_b64 exec, 1")
        self("s_not_b32 s92, s92")
        self(f"v_mov_b32 v1, {8*li}")
        self("v_mov_b32 v4, s92"); self("v_mov_b32 v5, s94")
        self("buffer_atomic_umax v4, v1, s[96:99], 0 offen")
        self("buffer_atomic_umax v5, v1, s[96:99], 0 offen offset:4")
        self(f"{lab}:")
    def endpgm(self, kidx, nmarks=4):
        if self.dbgprof: self.dbg_end({0:0,1:1,3:2}[kidx])
        if self.prof:
            self("s_waitcnt vmcnt(0) lgkmcnt(0)")
            self("s_memrealtime s[94:95]")
            self("s_memtime s[80:81]")
            self("s_load_dwordx2 s[96:97], s[0:1], 104")
            self("s_waitcnt lgkmcnt(0)")
            self(f"s_add_u32 s96, s96, {0x2000000 + kidx*0x40000}")
            self("s_addc_u32 s97, s97, 0")
            self("s_mov_b32 s98, 0x40000")
            self("s_mov_b32 s99, 0x20000")
            self("s_mov_b64 exec, 1")
            self("v_lshrrev_b32 v1, 6, v0")
            self("s_lshl_b32 s3, s2, 3")
            self("v_add_u32 v1, s3, v1")
            self("v_lshlrev_b32 v1, 6, v1")
            self("s_sub_u32 s80, s80, s82")
            self("v_mov_b32 v4, s92"); self("v_mov_b32 v5, s94"); self("v_mov_b32 v6, s80"); self("v_mov_b32 v7, 0x12345678")
            self("buffer_store_dwordx4 v[4:7], v1, s[96:99], 0 offen")
            for g in range(3):
                for e in range(4):
                    n = 4*g + e
                    if n < nmarks: self(f"v_mov_b32 v{8+4*g+e}, s{self.mreg(n)}")
                    else: self(f"v_mov_b32 v{8+4*g+e}, 0")
                self(f"buffer_store_dwordx4 v[{8+4*g}:{11+4*g}], v1, s[96:99], 0 offen offset:{16+16*g}")
        self("s_endpgm")
    def rb(self, v, t=None):
        t = t or v
        self(f"v_cvt_pk_bf16_f32 {t}, {v}, {v}")
        self(f"v_lshlrev_b32 {v}, 16, {t}")


class Vm:
    def __init__(self, A):
        self.A = A; self.ops = []; self.done = 0
    def op(self, text, tag):
        self.A(text); self.ops.append(tag)
        out = len(self.ops) - self.done
        assert out <= 63, f"too many outstanding vm ops ({out}) at {text}"
    def wait(self, *tags, extra=""):
        last = max(i for i, t in enumerate(self.ops) if t in tags)
        n = len(self.ops) - 1 - last
        if last + 1 > self.done:
            self.A(f"s_waitcnt vmcnt({n}){extra}")
            self.done = last + 1
        elif extra: self.A(f"s_waitcnt{extra}")
    def clone(self):
        v = Vm(self.A); v.ops = list(self.ops); v.done = self.done; return v
    def wait_all(self, extra=""):
        self.A(f"s_waitcnt vmcnt(0){extra}"); self.done = len(self.ops)
```
